```python
import torch

def _softmax(x, axis=-1):
    return torch.softmax(x, dim=axis)

def _gelu(x):
    return torch.nn.functional.gelu(x, approximate='tanh')

def _silu(x):
    return torch.nn.functional.silu(x)

def _sigmoid(x):
    return torch.sigmoid(x)

def _layernorm(x, axis=-1, eps=1e-05):
    m = x.mean(dim=axis, keepdim=True)
    v = x.var(dim=axis, keepdim=True, unbiased=False)
    return (x - m) / torch.sqrt(v + eps)

def _scatter_add(tgt, idx, src, axis=0):
    return tgt.clone().index_add_(axis, idx, src)

def _segment_sum(src, seg, n):
    out = torch.zeros((n,) + src.shape[1:], dtype=src.dtype)
    return out.index_add_(0, seg, src)

def _pad(x, pw):
    flat = tuple((v for pair in reversed(pw) for v in pair))
    return torch.nn.functional.pad(x, flat)
kernel_name = 'sequential_preLN__ssm_conv_s4__mixer_gmlp__prompt'

def setup_inputs():

    _w = lambda a: (lambda t: t.to(torch.bfloat16) if t.is_floating_point() else t)(torch.as_tensor(a))

    def _A_setup():
        B, L, D, N = (1, 2048, 576, 128)
        A_re = -(lambda _x: torch.exp(torch.as_tensor(_x)))((lambda *s: torch.randn(*s, dtype=torch.bfloat16) * 6.4)(D, N))
        A_im = torch.pi * (lambda *s: torch.randn(*s, dtype=torch.bfloat16) * 0.05)(D, N)
        B_re = (lambda *s: torch.randn(*s, dtype=torch.bfloat16) * 0.05)(D, N)
        B_im = (lambda *s: torch.randn(*s, dtype=torch.bfloat16) * 0.05)(D, N)
        C_re = (lambda *s: torch.randn(*s, dtype=torch.bfloat16) * 0.05)(D, N)
        C_im = (lambda *s: torch.randn(*s, dtype=torch.bfloat16) * 0.05)(D, N)
        log_dt = (lambda *s: torch.randn(*s, dtype=torch.bfloat16) * 0.05)(D) * 0.5 - 4.0
        Dskip = (lambda *s: torch.randn(*s, dtype=torch.bfloat16) * 0.05)(D)
        return {'u': _w((lambda *s: torch.randn(*s, dtype=torch.bfloat16) * 0.05)(B, L, D)), 'A_re': _w(A_re), 'A_im': _w(A_im), 'B_re': _w(B_re), 'B_im': _w(B_im), 'C_re': _w(C_re), 'C_im': _w(C_im), 'log_dt': _w(log_dt), 'Dskip': _w(Dskip)}
    _A_in = _A_setup()

    def _B_setup():
        B, S, D, F = (1, 2048, 576, 4608)
        Fh = F // 2
        return {'x': _w((lambda *s: torch.randn(*s, dtype=torch.bfloat16) * 0.05)(B, S, D)), 'w_in': _w((lambda *s: torch.randn(*s, dtype=torch.bfloat16) * 0.4)(D, 2 * Fh)), 'w_sp': _w(0.01 * (lambda *s: torch.randn(*s, dtype=torch.bfloat16) * 0.4)(S, S)), 'b_sp': _w(1.0 + 0.01 * (lambda *s: torch.randn(*s, dtype=torch.bfloat16) * 0.05)(S)), 'w_out': _w((lambda *s: torch.randn(*s, dtype=torch.bfloat16) * 0.05)(Fh, D))}
    _B_in = _B_setup()
    return {'A_u': _A_in['u'], 'A_A_re': _A_in['A_re'], 'A_A_im': _A_in['A_im'], 'A_B_re': _A_in['B_re'], 'A_B_im': _A_in['B_im'], 'A_C_re': _A_in['C_re'], 'A_C_im': _A_in['C_im'], 'A_log_dt': _A_in['log_dt'], 'A_Dskip': _A_in['Dskip'], 'B_x': _B_in['x'], 'B_w_in': _B_in['w_in'], 'B_w_sp': _B_in['w_sp'], 'B_b_sp': _B_in['b_sp'], 'B_w_out': _B_in['w_out']}

def reference(A_u, A_A_re, A_A_im, A_B_re, A_B_im, A_C_re, A_C_im, A_log_dt, A_Dskip, B_x, B_w_in, B_w_sp, B_b_sp, B_w_out):

    def _A_ref(u, A_re, A_im, B_re, B_im, C_re, C_im, log_dt, Dskip):
        Bsz, L, D = u.shape
        dt = torch.exp(log_dt)[:, None]
        A = A_re + 1j * A_im
        Bc = B_re + 1j * B_im
        Cc = C_re + 1j * C_im
        logdA = dt * A
        dB = dt * Bc
        l = (lambda x, dt: x.to(dt))(torch.arange(L), A_re.dtype)
        P = torch.exp(logdA[:, :, None] * l[None, None, :])
        K = torch.einsum('dn,dnl,dn->dl', Cc, P, dB).real
        L2 = 2 * L
        Kp = _pad(K, ((0, 0), (0, L)))
        up = (lambda x, *d: x.permute(*d))(u, 0, 2, 1)
        up = _pad(up, ((0, 0), (0, 0), (0, L)))
        Kf = (lambda x, axes=(-2, -1): torch.fft.rfft2(x.float(), dim=axes))(Kp[:, None, :], axes=(-2, -1))
        Uf = (lambda x, axes=(-2, -1): torch.fft.rfft2(x.float(), dim=axes))(up[:, :, None, :], axes=(-2, -1))
        Yf = Uf * Kf[None, :, :, :]
        y = (lambda x, s, axes=(-2, -1): torch.fft.irfft2(x, s=s, dim=axes).to(torch.bfloat16))(Yf, (1, L2), axes=(-2, -1))[:, :, 0, :L]
        y = (lambda x, *d: x.permute(*d))(y, 0, 2, 1) + u * Dskip[None, None, :]
        return y

    def _B_ref(x, w_in, w_sp, b_sp, w_out):
        B, S, D = x.shape
        F = w_in.shape[-1]
        Fh = F // 2
        z = _gelu(torch.einsum('bsd,df->bsf', x, w_in))
        z1 = z[..., :Fh].clone()
        z2 = _layernorm(z[..., Fh:], axis=-1)
        g = torch.einsum('ts,bsf->btf', w_sp, z2) + b_sp[None, :, None]
        return torch.einsum('bsf,fd->bsd', z1 * g, w_out)
    x = A_u
    h = x + _A_ref(_layernorm(x, axis=-1), A_A_re, A_A_im, A_B_re, A_B_im, A_C_re, A_C_im, A_log_dt, A_Dskip)
    h2 = h + _B_ref(_layernorm(h, axis=-1), B_w_in, B_w_sp, B_b_sp, B_w_out)
    return h2
```

```python
class Kernel:
    def __init__(self, name, grid, block, lds=0, vgpr=256, sgpr=102, accum=None, agpr=0):
        self.name = name; self.grid = grid; self.block = block; self.lds = lds
        self.vgpr = vgpr; self.sgpr = sgpr; self.accum = accum; self.agpr = agpr
        self.lines = []
        self._lab = 0
    def e(self, s):
        for l in s.strip("\n").split("\n"):
            l = l.strip()
            if l:
                self.lines.append(("" if l.endswith(":") else "    ") + l)
    def __call__(self, s):
        self.e(s)
    def label(self, base="L"):
        self._lab += 1
        return f"{self.name[:-7]}_{base}{self._lab}"
    def text(self):
        n = self.name
        out = [f".globl {n}", ".p2align 8", f".type {n},@function", f"{n}:"]
        out += self.lines
        return "\n".join(out) + "\n"
    def desc(self):
        arch = self.vgpr
        acc = self.accum if self.accum is not None else (arch + 3) // 4 * 4
        nfv = acc + self.agpr if self.agpr else arch
        return f""".p2align 6
.amdhsa_kernel {self.name}
  .amdhsa_next_free_vgpr {nfv}
  .amdhsa_next_free_sgpr {self.sgpr}
  .amdhsa_accum_offset {acc}
  .amdhsa_group_segment_fixed_size 0
  .amdhsa_kernarg_size 136
  .amdhsa_user_sgpr_count 2
  .amdhsa_user_sgpr_kernarg_segment_ptr 1
  .amdhsa_system_sgpr_workgroup_id_x 1
  .amdhsa_float_denorm_mode_32 3
  .amdhsa_float_denorm_mode_16_64 3
.end_amdhsa_kernel
"""

def write_file(path, kernels, launches, header=""):
    out = []
    if header:
        out.append(header.rstrip("\n"))
    for k in launches:
        out.append(f"; @launch kernel={k.name} grid=({k.grid},1,1) block=({k.block},1,1) lds={k.lds}")
    out.append('.amdgcn_target "amdgcn-amd-amdhsa--gfx950"')
    out.append(".text")
    for k in kernels:
        out.append(k.text())
    out.append('.section .rodata,"a"')
    for k in kernels:
        out.append(k.desc())
    open(path, "w").write("\n".join(out))


class Track:
    def __init__(self, k):
        self.k = k; self.l = []; self.v = []
        self.l_done = -1; self.v_done = -1
    def lds(self, ins, tag=None):
        self.k(ins); self.l.append(tag)
    def vm(self, ins, tag=None):
        self.k(ins); self.v.append(tag)
    def _last(self, lst, tag):
        idx = [i for i, t in enumerate(lst) if t == tag]
        assert idx, f"tag {tag} not found"
        return idx[-1]
    def wait_l(self, tag):
        i = self._last(self.l, tag)
        if i <= self.l_done: return
        n = len(self.l) - 1 - i
        n = min(n, 15)
        self.k(f"s_waitcnt lgkmcnt({n})"); self.l_done = len(self.l) - 1 - n
    def wait_v(self, tag):
        i = self._last(self.v, tag)
        if i <= self.v_done: return
        n = len(self.v) - 1 - i
        n = min(n, 63)
        self.k(f"s_waitcnt vmcnt({n})"); self.v_done = len(self.v) - 1 - n
    def wait_all_l(self):
        if self.l_done < len(self.l) - 1:
            self.k("s_waitcnt lgkmcnt(0)"); self.l_done = len(self.l) - 1
    def wait_all_v(self):
        if self.v_done < len(self.v) - 1:
            self.k("s_waitcnt vmcnt(0)"); self.v_done = len(self.v) - 1


class Track2(Track):
    def __init__(self, k):
        super().__init__(k)
        self.vv = [[], []]; self.vd = [-1, -1]
    def vm(self, ins, tag=None, view=None):
        self.k(ins)
        for w in (0, 1):
            if view is None or view == w: self.vv[w].append(tag)
    def wait_v(self, *tags):
        need = []
        for w in (0, 1):
            idx = [i for i, t in enumerate(self.vv[w]) if t in tags]
            if idx and idx[-1] > self.vd[w]:
                need.append(len(self.vv[w]) - 1 - idx[-1])
        if not need: return
        n = min(min(need), 63)
        self.k(f"s_waitcnt vmcnt({n})")
        for w in (0, 1):
            self.vd[w] = max(self.vd[w], len(self.vv[w]) - 1 - n)
    def wait_all_v(self):
        self.k("s_waitcnt vmcnt(0)")
        for w in (0, 1): self.vd[w] = len(self.vv[w]) - 1
```

```python
import math, struct
from asmlib import *
from layouts import *
from k_gemm2 import srd, stamp_begin, stamp_end
from k_gemm1_v2 import f2u, GC0, GC1, ln_finalize

def gemm1(stamp=False, st_flags="", prof=False, hprio=0, cprio=0):
    USLOT = 19456; NU = 6
    HB = USLOT*NU
    CB = HB + 16384
    LDS = CB + 4096
    k = Kernel("g1_kernel", 256, 512, lds=LDS, vgpr=256, sgpr=96)
    n = "g1"
    A = 32; EXA = 176; WR = 180; NR = 7; ACC = 208; TMP = 240
    PK = 16
    PD = 5
    K0, K1, SD = 8+4, 8+5, 8+6
    k(f"""
    s_cmp_ge_u32 s2, 256
    s_cbranch_scc1 {n}_end
    s_load_dwordx2 s[8:9], s[0:1], 128     ; ws
    """)
    if stamp: stamp_begin(k)
    k(f"""
    v_lshrrev_b32 v4, 6, v0
    v_and_b32 v1, 63, v0                   ; lane
    s_and_b32 s10, s2, 7                   ; x
    v_readfirstlane_b32 s3, v4             ; wave
    s_lshr_b32 s11, s2, 3                  ; y
    s_and_b32 s12, s10, 1
    s_lshl_b32 s12, s12, 3
    s_and_b32 s13, s11, 7
    s_add_u32 s12, s12, s13                ; tb
    s_lshr_b32 s13, s10, 1
    s_lshl_b32 s13, s13, 2
    s_lshr_b32 s14, s11, 3
    s_add_u32 s13, s13, s14                ; j
    s_and_b32 s14, s3, 3                   ; rw
    v_lshlrev_b32 v8, 4, v1                ; lane*16
    v_and_b32 v2, 31, v1                   ; t32
    v_lshrrev_b32 v3, 5, v1                ; h
    s_lshl_b32 s18, s12, 2
    s_add_u32 s18, s18, s14
    s_mul_i32 s20, s13, 9
    s_add_u32 s21, s20, 1
    s_lshr_b32 s21, s21, 1                 ; T2base
    s_lshr_b32 s22, s20, 1                 ; T1base
    s_and_b32 s32, s13, 1
    s_waitcnt lgkmcnt(0)
    """)
    srd(k, 24, 8, 9, 0x10000000)
    def common_addr():
        k(f"""
        s_lshl_b32 s33, s14, 11
        s_add_u32 s33, s33, {HB}
        v_add_u32 v7, s33, v8
        s_lshl_b32 s33, s14, 10
        s_add_u32 s33, s33, {CB}
        v_add_u32 v6, s33, v8
        v_lshrrev_b32 v24, 4, v2               ; t>>4
        s_lshl_b32 s33, s18, 1
        v_add_u32 v24, s33, v24                ; tb16
        s_mov_b32 s33, {72*1024}
        v_mul_lo_u32 v5, v24, s33
        v_and_b32 v24, 15, v2
        v_lshlrev_b32 v24, 4, v24
        v_add_u32 v5, v5, v24
        v_lshlrev_b32 v24, 8, v3
        v_add_u32 v5, v5, v24
        s_lshl_b32 s35, s22, 10
        s_add_u32 s35, s35, {WS_Z1}
        """)
    k(f"""
    s_cmp_ge_u32 s3, 4
    s_cbranch_scc1 {n}_loader
    """)
    def dump_prof():
        k("s_memtime s[72:73]\ns_waitcnt lgkmcnt(0)")
        k("s_lshl_b32 s92, s2, 9\ns_lshl_b32 s93, s3, 6\ns_add_u32 s92, s92, s93\ns_add_u32 s92, s92, 0xF100000\nv_mov_b32 v29, 0")
        for i in range(13):
            k(f"s_sub_u32 s93, s{48+2*i}, s84\nv_mov_b32 v30, s93\nbuffer_store_dword v30, v29, s[24:27], s92 offen offset:{4*i}")
    def S(s): return lambda: k(s)
    def gelu4(V, Y, X):
        E = range(4); F = []
        for e in E: F.append(S(f"v_mul_f32 v{Y+e}, v{V+e}, v{V+e}"))
        for e in E: F.append(S(f"v_fma_f32 v{Y+e}, v{Y+e}, v{K1}, v{K0}"))
        for e in E: F.append(S(f"v_mul_f32 v{Y+e}, v{Y+e}, v{V+e}"))
        for e in E: F.append(S(f"v_exp_f32 v{Y+e}, v{Y+e}"))
        for e in E: F.append(S(f"v_fma_f32 v{Y+e}, v{Y+e}, v{SD}, v{SD}"))
        for e in E: F.append(S(f"v_rcp_f32 v{Y+e}, v{Y+e}"))
        for e in E: F.append(S(f"v_mul_f32 v{X+e}, v{V+e}, v{Y+e}"))
        return F
    def swap_add(a, b, t0, t1):
        return [S(x.strip()) for x in f"""
        v_mov_b32 v{t0}, v{a}
        v_mov_b32 v{t1}, v{b}
        s_nop 1
        v_permlane32_swap_b32 v{a}, v{t0}
        v_permlane32_swap_b32 v{b}, v{t1}
        s_nop 1
        v_add_f32 v{a}, v{a}, v{t0}
        v_add_f32 v{b}, v{b}, v{t1}
        """.strip().split("\n")]
    T = Track(k)
    def aload(ks):
        if ks % 4 == 0 and ks: k("s_add_u32 s19, s19, 4096")
        T.vm(f"buffer_load_dwordx4 v[{A+4*ks}:{A+4*ks+3}], v8, s[24:27], s19 offen offset:{(ks%4)*1024}", ("a", ks))
    AL = 16
    k(f"""
    s_mul_i32 s19, s18, {36*1024}
    s_add_u32 s19, s19, {WS_HF}
    """)
    for ks in range(AL): aload(ks)
    if cprio: k(f"s_setprio {cprio}")
    common_addr()
    k(f"""
    v_add_u32 v4, {3*USLOT}, v8
    v_mov_b32 v28, 0x3f803f80
    v_cmp_eq_u32 s[74:75], 0, v3
    s_add_u32 s33, s32, 3
    s_lshl_b32 s33, s33, 10
    s_add_u32 s35, s35, s33
    """)
    for r in range(8): k(f"v_mov_b32 v{TMP+r}, 0")
    def wread(ti, m):
        u = 2*ti + (0 if m < 18 else 1)
        slot = u % NU
        va, off = (8, slot*USLOT) if slot < 3 else (4, (slot-3)*USLOT)
        off += (m if m < 18 else m-18)*1024
        g = ti*37 + m
        r = WR + (g % NR)*4
        T.lds(f"ds_read_b128 v[{r}:{r+3}], v{va} offset:{off}", ("w", g))
    def mfma(ti, m):
        g = ti*37 + m
        if ti == 0 and m < 36: T.wait_v(("a", m))
        nxt = ("w", g+1)
        if g % 2 == 1 and nxt in T.l: T.wait_l(nxt)
        else: T.wait_l(("w", g))
        a = ACC + (ti % 2)*16; w = WR + (g % NR)*4
        h = A + 4*m if m < 36 else EXA
        c = f"v[{a}:{a+15}]" if m else "0"
        k(f"v_mfma_f32_32x32x16_bf16 v[{a}:{a+15}], v[{w}:{w+3}], v[{h}:{h+3}], {c}")
    def handoff(ti):
        a = ACC + (ti % 2)*16
        F = []
        for gi, g in enumerate((0, 2, 1, 3)):
            V = a + 4*g
            F.append(S(f"v_cvt_pk_bf16_f32 v{PK+2*gi}, v{V}, v{V+1}"))
            F.append(S(f"v_cvt_pk_bf16_f32 v{PK+2*gi+1}, v{V+2}, v{V+3}"))
            if gi % 2 == 1:
                hf = gi // 2; P = PK + 4*hf
                F.append(lambda hf=hf, P=P: T.lds(f"ds_write_b128 v7, v[{P}:{P+3}] offset:{(ti%2)*8192 + hf*1024}", ("ho", ti)))
        return F
    def run(mf, fillers):
        nm = len(mf)
        for i, (m, post) in enumerate(mf):
            m()
            if post: post()
            rem = nm - i
            cnt = -(-len(fillers) // rem)
            for _ in range(cnt):
                if fillers: fillers.pop(0)()
        while fillers: fillers.pop(0)()
    nb = [0]
    def barrier():
        T.wait_all_l()
        k("s_barrier")
        if prof: k(f"s_memtime s[{48+2*nb[0]}:{49+2*nb[0]}]")
        nb[0] += 1
    H = 18 - PD + 2
    def mstep(ti, m):
        g = m + PD
        def post():
            if m < H and g >= 18: return
            if g < 37: wread(ti, g)
            elif ti + 1 < 9: wread(ti+1, g-37)
        return (lambda: mfma(ti, m), post)
    def mid(ti):
        barrier()
        for g in range(18, H+PD): wread(ti, g)
    barrier()
    for m in range(PD): wread(0, m)
    for m in range(36):
        if m == H: mid(0)
        if m + AL < 36: aload(m + AL)
        mm, post = mstep(0, m)
        mm(); post()
        for d in range(4):
            r = A + 4*m + d
            k(f"v_dot2c_f32_bf16 v{TMP + d}, v{r}, v28")
            k(f"v_dot2c_f32_bf16 v{TMP + 4 + d}, v{r}, v{r}")
    G = TMP
    k(f"""
    s_nop 2
    v_add_f32 v{G}, v{G}, v{G+1}
    v_add_f32 v{G+2}, v{G+2}, v{G+3}
    v_add_f32 v{G+4}, v{G+4}, v{G+5}
    v_add_f32 v{G+6}, v{G+6}, v{G+7}
    v_add_f32 v24, v{G}, v{G+2}
    v_add_f32 v25, v{G+4}, v{G+6}
    """)
    lf = swap_add(24, 25, 26, 27)
    lf += [S(x) for x in ln_finalize(24, 25, 576, 26, SD, 29)]
    lf += [S("v_lshrrev_b32 v27, 16, v26"),
           S(f"v_mul_f32 v{K0}, {hex(f2u(GC0))}, v29"),
           S(f"v_or_b32 v26, v26, v27"),
           S(f"v_mul_f32 v{K1}, v29, v29"),
           S(f"v_mov_b32 v{EXA+2}, 0"),
           S(f"v_mov_b32 v{EXA+3}, 0"),
           S(f"v_cndmask_b32 v{EXA}, 0, v26, s[74:75]"),
           S(f"v_cndmask_b32 v{EXA+1}, 0, v27, s[74:75]"),
           S(f"v_mul_f32 v{K1}, v{K1}, v{K0}"),
           S(f"v_mul_f32 v{K1}, {hex(f2u(0.044715))}, v{K1}"),
           S("v_mov_b32 v15, 0"),
           lambda: T.lds("ds_write_b128 v6, v[12:15]", "cw")]
    for f in lf: f()
    mm, post = mstep(0, 36); mm(); post()
    for i in range(1, 9):
        mf = [mstep(i, m) for m in range(37)]
        run(mf[:5], [])
        k("s_nop 1")
        run(mf[5:11], handoff(i-1))
        run(mf[11:H], [])
        mid(i)
        run(mf[H:], [])
    if stamp: stamp_end(k, 24, 3, vt=25)
    k("s_nop 7\ns_nop 4")
    a = ACC
    for gi, g in enumerate((0, 2, 1, 3)):
        Y = TMP + (gi % 2)*8; X = Y + 4
        for f in gelu4(a + 4*g, Y, X): f()
        k(f"v_cvt_pk_bf16_f32 v{PK+2*gi}, v{X}, v{X+1}")
        k(f"v_cvt_pk_bf16_f32 v{PK+2*gi+1}, v{X+2}, v{X+3}")
        if gi % 2 == 1:
            hf = gi // 2; P = PK + 4*hf
            k(f"buffer_store_dwordx4 v[{P}:{P+3}], v5, s[24:27], s35 offen offset:{hf*512} {st_flags}")
    if prof: dump_prof()
    k("s_endpgm")
    k(f"""
    {n}_loader:
    s_add_u32 s23, s21, 72
    s_mul_i32 s28, s23, {37*1024}
    s_mul_i32 s29, s22, {37*1024}
    s_mul_i32 s76, s14, 4608
    s_mul_i32 s77, s14, 4864
    s_mov_b64 s[40:41], exec
    s_mov_b32 s78, -1
    s_mov_b32 s79, 0
    s_mov_b32 s80, -1
    s_mov_b32 s81, 0xffff
    s_cmp_eq_u32 s32, 1
    s_cbranch_scc1 {n}_lodd
    """)
    def helper(par):
        T = Track(k)
        n2 = 5 - par
        IN = 32; U = 40; TM = 56; ZH = 80; G = 128; OUT = 160
        def dma(u):
            ti = u // 2; half = u % 2
            z2 = ti < n2
            base = 28 if z2 else 29
            toff = (ti if z2 else ti - n2)*37*1024 + half*18432 + WS_W1
            slot = (u % NU)*USLOT
            wo = 77 if half else 76
            msk = "s[80:81]" if half else "s[78:79]"
            F = []
            def f0():
                k(f"s_add_u32 s82, s{base}, s{wo}\ns_add_u32 m0, s{wo}, {slot}\ns_add_u32 s82, s82, {toff}")
                T.vm(f"buffer_load_dwordx4 v8, s[24:27], s82 offen lds", ("u", u))
            F.append(f0)
            for o in range(1, 4): F.append(lambda o=o: T.vm(f"buffer_load_dwordx4 v8, s[24:27], s82 offen offset:{o*1024} lds", ("u", u)))
            def f4():
                k(f"s_add_u32 m0, s{wo}, {slot+4096}\ns_add_u32 s82, s82, 4096\ns_mov_b64 exec, {msk}")
                T.vm("buffer_load_dwordx4 v8, s[24:27], s82 offen lds", ("u", u))
                k("s_mov_b64 exec, s[40:41]")
            F.append(f4)
            return F
        def go(F):
            for f in F: f()
        def mix(d, r):
            if not d: return r
            per = max(1, len(r)//len(d)); out = []
            d = list(d)
            while d:
                out.append(d.pop(0)); out += r[:per]; r = r[per:]
            return out + r
        go(dma(0)); go(dma(1))
        if hprio: k(f"s_setprio {hprio}")
        common_addr()
        k(f"""
        s_lshl_b32 s33, s18, 12
        s_add_u32 s37, s33, {WS_ST}
        s_lshl_b32 s34, s13, 3
        s_add_u32 s39, s37, s34
        v_lshlrev_b32 v30, 7, v2
        v_lshlrev_b32 v31, 6, v3
        v_add_u32 v31, v31, v30
        v_lshlrev_b32 v9, 5, v2
        s_mov_b32 s33, {64*9216 - 8*1024}
        v_mul_lo_u32 v10, v3, s33
        v_add_u32 v10, v10, v9
        v_lshlrev_b32 v20, 10, v3
        v_add_u32 v9, v9, v20                  ; z2 voffset
        s_lshl_b32 s33, s13, 6
        s_add_u32 s33, s33, s18
        s_mul_i32 s36, s33, 9216
        s_add_u32 s36, s36, {WS_Z2 + par*1024}
        v_mov_b32 v24, 0
        v_mov_b32 v25, 0
        v_mov_b32 v26, 0
        v_mov_b32 v27, 0
        """)
        T.wait_v(("u", 0)); k("s_barrier")
        go(dma(2))
        def epi(ti):
            z2 = ti < n2
            F = [lambda: T.wait_l(("in", ti))]
            P0 = (ZH + 8*ti) if z2 else OUT + 8*(ti % 2)
            for gi in range(4):
                V = U + (gi % 2)*8; Y = TM + (gi % 2)*8; X = Y + 4
                for d in range(2):
                    F.append(S(f"v_lshlrev_b32 v{V+2*d}, 16, v{IN+2*gi+d}"))
                    F.append(S(f"v_and_b32 v{V+2*d+1}, 0xffff0000, v{IN+2*gi+d}"))
                F += gelu4(V, Y, X)
                F.append(S(f"v_cvt_pk_bf16_f32 v{P0+2*gi}, v{X}, v{X+1}"))
                F.append(S(f"v_cvt_pk_bf16_f32 v{P0+2*gi+1}, v{X+2}, v{X+3}"))
                if z2:
                    for e in range(4):
                        F.append(S(f"v_add_f32 v{24+2*(e&1)}, v{24+2*(e&1)}, v{X+e}"))
                        F.append(S(f"v_fmac_f32 v{25+2*(e&1)}, v{X+e}, v{X+e}"))
                elif gi % 2 == 1:
                    hf = gi // 2; P = P0 + 4*hf
                    def st(hf=hf, P=P):
                        T.vm(f"buffer_store_dwordx4 v[{P}:{P+3}], v5, s[24:27], s35 offen offset:{hf*512} {st_flags}", ("z1", ti))
                        if hf: k("s_add_u32 s35, s35, 1024")
                    F.append(st)
            return F
        def publish():
            def st():
                k("s_mov_b64 exec, s[78:79]")
                T.vm(f"buffer_store_dwordx2 v[24:25], v30, s[24:27], s39 offen sc0 sc1", "pub")
                k("s_mov_b64 exec, s[40:41]")
            return [S("v_add_f32 v24, v24, v26"), S("v_add_f32 v25, v25, v27")] + swap_add(24, 25, 26, 27) + [st]
        pl = [f"buffer_load_dwordx4 v[{G+4*i}:{G+4*i+3}], v31, s[24:27], s37 offen offset:{16*i} sc0 sc1" for i in range(4)]
        for i in range(9):
            T.wait_all_l()
            T.wait_v(("u", min(2*i+2, 17)))
            k("s_barrier")
            if i == 1: T.lds("ds_read_b128 v[12:15], v6", "c")
            if i >= 1:
                for hf in range(2):
                    T.lds(f"ds_read_b128 v[{IN+4*hf}:{IN+4*hf+3}], v7 offset:{((i-1)%2)*8192 + hf*1024}", ("in", i-1))
            if i == 0: d = dma(3) + dma(4) + dma(5) + dma(6)
            else: d = sum([dma(u) for u in (2*i+5, 2*i+6) if u < 18], [])
            w = epi(i-1) if i >= 1 else []
            if i - 1 == n2 - 1: w = w + publish()
            if i == 8: d = [lambda x=x: T.vm(x, "poll") for x in pl]
            go(d[:2] + mix(d[2:], w))
        lab = k.label("poll"); lab2 = k.label("pok"); lab3 = k.label("pchk")
        k(f"s_mov_b32 s38, 0\ns_branch {lab3}\n{lab}:")
        for x in pl: k(x)
        k(f"{lab3}:\ns_waitcnt vmcnt(0)")
        k(f"v_max3_u32 v26, v{G}, v{G+1}, v{G+2}")
        for i in range(3, 15, 2): k(f"v_max3_u32 v26, v26, v{G+i}, v{G+i+1}")
        k(f"""
        v_max_u32 v26, v26, v{G+15}
        v_cmp_eq_u32 vcc, -1, v26
        s_add_u32 s38, s38, 1
        s_cbranch_vccz {lab2}
        s_cmp_lt_u32 s38, 0x40000
        s_cbranch_scc1 {lab}
        {lab2}:
        """)
        for st_ in (8, 4, 2):
            for i in range(st_): k(f"v_add_f32 v{G+i}, v{G+i}, v{G+i+st_}")
        go(swap_add(G, G+1, G+2, G+3))
        for x in ln_finalize(G, G+1, 2304, G+2, G+3, G+4): k(x)
        k(f"v_mul_f32 v{G+5}, -v{G+2}, v{G+4}")
        for ti in range(n2):
            for hf in range(2):
                X = G + 8; P = ZH + ti*8 + hf*4
                for d in range(4):
                    k(f"v_lshlrev_b32 v{X+2*d}, 16, v{P+d}")
                    k(f"v_and_b32 v{X+2*d+1}, 0xffff0000, v{P+d}")
                for e in range(8): k(f"v_fma_f32 v{X+e}, v{X+e}, v{G+4}, v{G+5}")
                for d in range(4): k(f"v_cvt_pk_bf16_f32 v{P+d}, v{X+2*d}, v{X+2*d+1}")
                va = 10 if (par == 0 and ti == 4) else 9
                k(f"""
                s_nop 1
                v_permlane32_swap_b32 v{P}, v{P+2}
                v_permlane32_swap_b32 v{P+1}, v{P+3}
                s_nop 0
                buffer_store_dwordx4 v[{P}:{P+3}], v{va}, s[24:27], s36 offen offset:{16*hf} {st_flags}
                """)
            k("s_add_u32 s36, s36, 2048")
        if stamp: stamp_end(k, 24, 3, vt=25)
        k("s_endpgm")
    helper(0)
    k(f"{n}_lodd:")
    helper(1)
    k(f"""
    {n}_end:
    s_endpgm
    """)
    return k

if __name__ == "__main__":
    k = gemm1(stamp=True, prof=True); write_file("t_g1.s", [k], [k])
    k = gemm1(stamp=True, prof=True, hprio=1); write_file("t_g1_h1.s", [k], [k])
    k = gemm1(stamp=True, prof=True, cprio=1); write_file("t_g1_c1.s", [k], [k])
```

```python
import math, struct
from asmlib import *
from layouts import *
from k_gemm2 import srd, stamp_begin, stamp_end

def f2u(x): return struct.unpack("<I", struct.pack("<f", x))[0]
GC0 = -2.0*math.sqrt(2.0/math.pi)*math.log2(math.e)
GC1 = GC0*0.044715

def ln_finalize(s1, s2, n, m_out, s_out, r_out):
    t = s_out
    return [
    f"v_mul_f32 v{s1}, {hex(f2u(1.0/n))}, v{s1}",
    f"v_mul_f32 v{s2}, {hex(f2u(1.0/n))}, v{s2}",
    f"v_fma_f32 v{s2}, -v{s1}, v{s1}, v{s2}",
    f"v_max_f32 v{s2}, 0, v{s2}",
    f"v_cvt_pk_bf16_f32 v{m_out}, v{s1}, v{s1}",
    f"v_cvt_pk_bf16_f32 v{t}, v{s2}, v{s2}",
    f"v_and_b32 v{m_out}, 0xffff0000, v{m_out}",
    f"v_and_b32 v{t}, 0xffff0000, v{t}",
    f"v_add_f32 v{t}, {hex(f2u(1e-5))}, v{t}",
    f"v_cvt_pk_bf16_f32 v{t}, v{t}, v{t}",
    f"v_and_b32 v{t}, 0xffff0000, v{t}",
    f"v_sqrt_f32 v{t}, v{t}",
    "s_nop 0",
    f"v_cvt_pk_bf16_f32 v{t}, v{t}, v{t}",
    f"v_and_b32 v{t}, 0xffff0000, v{t}",
    f"v_rcp_f32 v{r_out}, v{t}",
    "s_nop 0"]

def gemm1(stamp=False, st_flags="", prof=False, noepi=False, nodma=False, cl=1, prio=True):
    USLOT = 19456; NU = 6
    XB = USLOT*NU
    SB = XB + 32768
    LDS = SB + 4096
    k = Kernel("g1_kernel", 256, 512, lds=LDS, vgpr=256, sgpr=96)
    n = "g1"
    A = 32; EXA = 104; WR = 108; NR = 8; EXW = 140; ACC = 144; RECV = 192; ZH = 200; TMP = 220; G = 240
    PD = 6; H = 5
    K0, K1, SD, S1, S2 = 15, 16, 17, 24, 25
    k(f"""
    s_cmp_ge_u32 s2, 256
    s_cbranch_scc1 {n}_end
    s_load_dwordx2 s[8:9], s[0:1], 128     ; ws
    """)
    if stamp: stamp_begin(k)
    k(f"""
    v_lshrrev_b32 v4, 6, v0
    v_and_b32 v1, 63, v0                   ; lane
    s_and_b32 s10, s2, 7                   ; x
    v_readfirstlane_b32 s3, v4             ; wave
    s_lshr_b32 s11, s2, 3                  ; y
    s_and_b32 s12, s10, 1
    s_lshl_b32 s12, s12, 3
    s_and_b32 s13, s11, 7
    s_add_u32 s12, s12, s13                ; tb
    s_lshr_b32 s13, s10, 1
    s_lshl_b32 s13, s13, 2
    s_lshr_b32 s14, s11, 3
    s_add_u32 s13, s13, s14                ; j
    s_and_b32 s14, s3, 3                   ; rw
    s_lshr_b32 s15, s3, 2                  ; kh
    v_lshlrev_b32 v8, 4, v1                ; lane*16
    s_lshl_b32 s18, s12, 2
    s_add_u32 s18, s18, s14
    s_mul_i32 s19, s18, 36
    s_mul_i32 s20, s15, 18
    s_add_u32 s19, s19, s20
    s_lshl_b32 s19, s19, 10
    s_add_u32 s19, s19, {WS_HF}            ; A soffset
    s_mul_i32 s20, s13, 9
    s_add_u32 s21, s20, 1
    s_lshr_b32 s21, s21, 1                 ; T2base
    s_lshr_b32 s22, s20, 1                 ; T1base
    s_add_u32 s23, s21, 72
    s_mul_i32 s28, s23, {37*1024}
    s_mul_i32 s29, s22, {37*1024}
    s_mul_i32 s30, s3, 2304
    s_mul_i32 s31, s3, 2432
    s_mov_b64 s[40:41], exec
    s_mov_b32 s42, 0xffff
    s_mov_b32 s43, 0
    s_mov_b32 s44, 0xffffff
    s_mov_b32 s45, 0
    s_and_b32 s32, s13, 1
    s_waitcnt lgkmcnt(0)
    """)
    srd(k, 24, 8, 9, 0x10000000)
    k(f"""
    s_cmp_eq_u32 s32, 1
    s_cbranch_scc1 {n}_odd
    """)
    def variant(par):
        T = Track2(k)
        n2 = 5 - par
        def is_z2(i): return i < n2
        def S(s): return lambda: k(s)
        def unit_params(u):
            ti = u // 2; half = u % 2
            base = 28 if is_z2(ti) else 29
            toff = (ti if is_z2(ti) else ti - n2)*37*1024 + half*18432 + WS_W1
            return base, toff, half, (u % NU)*USLOT
        def dma_unit8(u):
            base, toff, half, slot = unit_params(u)
            wo = 31 if half else 30
            msk = "s[44:45]" if half else "s[42:43]"
            k(f"s_add_u32 s33, s{base}, s{wo}")
            k(f"s_add_u32 m0, s{wo}, {slot}")
            k(f"s_add_u32 s33, s33, {toff}")
            T.vm(f"buffer_load_dwordx4 v8, s[24:27], s33 offen lds", ("u", u))
            T.vm(f"buffer_load_dwordx4 v8, s[24:27], s33 offen offset:1024 lds", ("u", u))
            k(f"s_mov_b64 exec, {msk}")
            T.vm(f"buffer_load_dwordx4 v8, s[24:27], s33 offen offset:2048 lds", ("u", u))
            k("s_mov_b64 exec, s[40:41]")
        def dma_unit4(u, who):
            base, toff, half, slot = unit_params(u)
            wo = 77 if half else 76
            msk = "s[80:81]" if half else "s[78:79]"
            br = "s_cbranch_vccnz" if who == 0 else "s_cbranch_vccz"
            F = []
            def mk(items):
                def f():
                    if nodma: return
                    lab = k.label("dg")
                    k(f"{br} {lab}")
                    for x in items:
                        if x.startswith("buffer"): T.vm(x, ("u", u), view=who)
                        else: k(x)
                    k(f"{lab}:")
                return f
            ld = lambda o: f"buffer_load_dwordx4 v8, s[24:27], s82 offen offset:{o} lds"
            F.append(mk([f"s_add_u32 s82, s{base}, s{wo}", f"s_add_u32 m0, s{wo}, {slot}", f"s_add_u32 s82, s82, {toff}", ld(0), ld(1024)]))
            F.append(mk([ld(2048), ld(3072)]))
            F.append(mk([f"s_add_u32 m0, s{wo}, {slot+4096}", "s_add_u32 s82, s82, 4096", f"s_mov_b64 exec, {msk}", ld(0), "s_mov_b64 exec, s[40:41]"]))
            return F
        def aload(ks):
            if ks % 4 == 0 and ks: k("s_add_u32 s19, s19, 4096")
            T.vm(f"buffer_load_dwordx4 v[{A+4*ks}:{A+4*ks+3}], v8, s[24:27], s19 offen offset:{(ks%4)*1024}", ("a", ks))
        AL = 6
        dma_unit8(0)
        for ks in range(3): aload(ks)
        dma_unit8(1)
        for ks in range(3, AL): aload(ks)
        k(f"""
        v_and_b32 v2, 31, v1                   ; t32
        v_lshrrev_b32 v3, 5, v1                ; h
        s_lshl_b32 s17, s15, 7                 ; 8*kh*16
        v_xor_b32 v19, s17, v8
        s_mul_i32 s76, s14, 4608
        s_mul_i32 s77, s14, 4864
        s_mov_b32 s78, -1
        s_mov_b32 s79, 0
        s_mov_b32 s80, -1
        s_mov_b32 s81, 0xffff
        s_mul_i32 s33, s15, 9216
        v_add_u32 v4, s33, v19                 ; W0a
        v_add_u32 v5, {4*USLOT}, v4            ; W0b
        s_mul_i32 s33, s15, 10240
        s_add_u32 s33, s33, {USLOT}
        v_add_u32 v6, s33, v19                 ; W1a
        v_add_u32 v7, {4*USLOT}, v6            ; W1b
        s_lshl_b32 s33, s3, 11
        s_add_u32 s33, s33, {XB}
        v_add_u32 v9, s33, v8
        s_xor_b32 s34, s3, 4
        s_lshl_b32 s34, s34, 11
        s_add_u32 s34, s34, {XB}
        v_add_u32 v10, s34, v8
        v_lshrrev_b32 v21, 4, v2               ; t>>4
        s_lshl_b32 s33, s18, 1
        v_add_u32 v20, s33, v21                ; tb16
        s_mov_b32 s33, {72*1024}
        v_mul_lo_u32 v12, v20, s33
        v_and_b32 v22, 15, v2
        v_lshlrev_b32 v20, 4, v22
        v_add_u32 v12, v12, v20
        s_lshl_b32 s33, s15, 1
        v_add_u32 v20, s33, v3                 ; q
        v_lshlrev_b32 v20, 8, v20
        v_add_u32 v12, v12, v20
        s_lshl_b32 s35, s22, 10
        s_add_u32 s35, s35, {WS_Z1}
        v_lshlrev_b32 v13, 5, v2
        s_lshl_b32 s33, s15, 4
        v_add_u32 v13, s33, v13
        s_mov_b32 s33, {64*9216 - 8*1024}
        v_mul_lo_u32 v14, v3, s33
        v_add_u32 v14, v14, v13
        v_lshlrev_b32 v20, 10, v3
        v_add_u32 v13, v13, v20
        s_lshl_b32 s33, s13, 6
        s_add_u32 s33, s33, s18
        s_mul_i32 s36, s33, 9216
        s_add_u32 s36, s36, {WS_Z2 + par*1024}
        """)
        for r in range(8): k(f"v_mov_b32 v{G+r}, 0")
        k(f"""
        v_mov_b32 v28, 0x3f803f80
        s_lshl_b32 s33, s3, 8
        s_add_u32 s33, s33, {SB}
        v_lshlrev_b32 v20, 3, v2
        v_add_u32 v20, s33, v20
        v_xor_b32 v21, 1024, v20
        v_lshlrev_b32 v30, 7, v2
        v_lshlrev_b32 v31, 6, v3
        v_add_u32 v31, v31, v30
        s_lshl_b32 s33, s18, 12
        s_add_u32 s37, s33, {WS_ST}
        s_lshl_b32 s34, s13, 3
        s_add_u32 s39, s37, s34
        v_cmp_eq_u32 s[74:75], 0, v3           ; h==0 mask
        s_cmp_eq_u32 s15, 0
        s_cselect_b64 vcc, 0, -1
        """)
        def wread(ti, m):
            u = 2*ti + (0 if m < 9 else 1)
            slot = u % NU
            if m < 9:
                va, off = (4, slot*USLOT) if slot < 4 else (5, 0)
                off += m*1024
            else:
                va, off = (6, (slot-1)*USLOT) if slot < 5 else (7, 0)
                off += (m-9)*1024
            g = ti*18 + m
            r = WR + (g % NR)*4
            T.lds(f"ds_read_b128 v[{r}:{r+3}], v{va} offset:{off}", ("w", g))
        def wread_ext(ti):
            u = 2*ti + 1; slot = u % NU
            va, off = (6, (slot-1)*USLOT) if slot < 5 else (7, 0)
            T.lds(f"ds_read_b128 v[{EXW}:{EXW+3}], v{va} offset:{off + 9*1024}", ("x", ti))
        def mfma(ti, m):
            g = ti*18 + m
            if ti == 0: T.wait_v(("a", m))
            nxt = ("w", g+1)
            if m % 2 == 1 and m != 17 and nxt in T.l: T.wait_l(nxt)
            else: T.wait_l(("w", g))
            a = ACC + (ti % 3)*16; w = WR + (g % NR)*4; h = A + 4*m
            c = f"v[{a}:{a+15}]" if m else "0"
            k(f"v_mfma_f32_32x32x16_bf16 v[{a}:{a+15}], v[{w}:{w+3}], v[{h}:{h+3}], {c}")
        def mfma_ext(ti):
            T.wait_l(("x", ti))
            a = ACC + (ti % 3)*16
            lab = k.label("sk")
            k(f"s_cbranch_vccnz {lab}")
            k(f"v_mfma_f32_32x32x16_bf16 v[{a}:{a+15}], v[{EXW}:{EXW+3}], v[{EXA}:{EXA+3}], v[{a}:{a+15}]")
            k(f"{lab}:")
        def keep_send(ti):
            a = ACC + (ti % 3)*16
            return [a+i for i in range(4)] + [a+8+i for i in range(4)], [a+4, a+12]
        def send(ti):
            _, sd = keep_send(ti)
            return [ (lambda r=r, i=i: T.lds(f"ds_write_b128 v9, v[{r}:{r+3}] offset:{(ti%2)*16384 + i*1024}", ("s", ti))) for i, r in enumerate(sd)]
        def epilogue(ti):
            kp, _ = keep_send(ti)
            z2 = is_z2(ti)
            F = []
            for i in range(2):
                F.append(lambda i=i: T.lds(f"ds_read_b128 v[{RECV+4*i}:{RECV+4*i+3}], v10 offset:{(ti%2)*16384 + i*1024}", ("r", ti)))
            PK = (ZH + 4*ti) if z2 else (TMP + 16)
            F.append(lambda: T.wait_l(("r", ti)))
            for grp in range(2):
                X = TMP + grp*8; Y = X + 4
                E = range(4)
                for e in E: F.append(S(f"v_add_f32 v{X+e}, v{kp[4*grp+e]}, v{RECV+4*grp+e}"))
                for e in E: F.append(S(f"v_mul_f32 v{Y+e}, v{X+e}, v{X+e}"))
                for e in E: F.append(S(f"v_fma_f32 v{Y+e}, v{Y+e}, v{K1}, v{K0}"))
                for e in E: F.append(S(f"v_mul_f32 v{Y+e}, v{Y+e}, v{X+e}"))
                for e in E: F.append(S(f"v_exp_f32 v{Y+e}, v{Y+e}"))
                for e in E: F.append(S(f"v_fma_f32 v{Y+e}, v{Y+e}, v{SD}, v{SD}"))
                for e in E: F.append(S(f"v_rcp_f32 v{Y+e}, v{Y+e}"))
                for e in E: F.append(S(f"v_mul_f32 v{X+e}, v{X+e}, v{Y+e}"))
                F.append(S(f"v_cvt_pk_bf16_f32 v{PK+2*grp}, v{X}, v{X+1}"))
                F.append(S(f"v_cvt_pk_bf16_f32 v{PK+2*grp+1}, v{X+2}, v{X+3}"))
                if z2:
                    for e in E:
                        F.append(S(f"v_add_f32 v{S1+2*(e&1)}, v{S1+2*(e&1)}, v{X+e}"))
                        F.append(S(f"v_fmac_f32 v{S2+2*(e&1)}, v{X+e}, v{X+e}"))
            if not z2:
                def st():
                    T.vm(f"buffer_store_dwordx4 v[{PK}:{PK+3}], v12, s[24:27], s35 offen {st_flags}", ("z1", ti))
                    k("s_add_u32 s35, s35, 1024")
                F.append(st)
            return F
        def half_reduce_write(a, b, t0, t1, tag):
            seq = f"""
            v_mov_b32 v{t0}, v{a}
            v_mov_b32 v{t1}, v{b}
            s_nop 1
            v_permlane32_swap_b32 v{a}, v{t0}
            v_permlane32_swap_b32 v{b}, v{t1}
            s_nop 1
            v_add_f32 v24, v{a}, v{t0}
            v_add_f32 v25, v{b}, v{t1}
            """
            return [S(x.strip()) for x in seq.strip().split("\n")] + [lambda: T.lds("ds_write_b64 v20, v[24:25]", tag)]
        def ln2_final():
            F = [lambda: T.lds("ds_read_b64 v[26:27], v21", "lnr"),
                 lambda: T.wait_l("lnr"),
                 S("v_add_f32 v24, v24, v26"), S("v_add_f32 v25, v25, v27")]
            F += [S(x) for x in ln_finalize(24, 25, 576, 26, SD, 29)]
            F += [S("v_lshrrev_b32 v27, 16, v26"),
                  S(f"v_mul_f32 v{K0}, {hex(f2u(GC0))}, v29"),
                  S(f"v_or_b32 v26, v26, v27"),
                  S(f"v_mul_f32 v{K1}, v29, v29"),
                  S(f"v_mov_b32 v{EXA+2}, 0"),
                  S(f"v_mov_b32 v{EXA+3}, 0"),
                  S(f"v_cndmask_b32 v{EXA}, 0, v26, s[74:75]"),
                  S(f"v_cndmask_b32 v{EXA+1}, 0, v27, s[74:75]"),
                  S(f"v_mul_f32 v{K1}, v{K1}, v{K0}"),
                  S(f"v_mul_f32 v{K1}, {hex(f2u(0.044715))}, v{K1}"),
                  S("v_mov_b32 v24, 0"), S("v_mov_b32 v25, 0"), S("v_mov_b32 v26, 0"), S("v_mov_b32 v27, 0")]
            return F
        def pub1():
            return [S("v_add_f32 v24, v24, v26"), S("v_add_f32 v25, v25, v27")] + half_reduce_write(24, 25, 26, 27, "p1")
        def pub2():
            def st():
                lab = k.label("pb")
                k(f"s_cbranch_vccnz {lab}")
                k("s_mov_b64 exec, s[78:79]")
                T.vm(f"buffer_store_dwordx2 v[24:25], v30, s[24:27], s39 offen sc0 sc1", "pub", view=0)
                k("s_mov_b64 exec, s[40:41]")
                k(f"{lab}:")
            return [lambda: T.lds("ds_read_b64 v[26:27], v21", "p2"), lambda: T.wait_l("p2"),
                    S("v_add_f32 v24, v24, v26"), S("v_add_f32 v25, v25, v27"), st]
        slow = []
        pl = [f"buffer_load_dwordx4 v[{G+4*i}:{G+4*i+3}], v31, s[24:27], s37 offen offset:{16*i} sc0 sc1" for i in range(4)]
        def poll_issue():
            return [lambda x=x: T.vm(x, "poll") for x in pl]
        def poll_check():
            chk = f"v_max3_u32 v26, v{G}, v{G+1}, v{G+2}\n"
            for i in range(3, 15, 2): chk += f"v_max3_u32 v26, v26, v{G+i}, v{G+i+1}\n"
            chk += f"""v_max_u32 v26, v26, v{G+15}
            v_cmp_eq_u32 s[82:83], -1, v26
            s_nop 0
            s_cmp_eq_u64 s[82:83], 0
            """
            def f():
                labs = k.label("slow"); labr = k.label("back")
                T.wait_v("poll")
                k(chk)
                k(f"s_mov_b32 s38, 0\ns_cbranch_scc0 {labs}\n{labr}:")
                slow.append(f"{labs}:\n" + "\n".join(pl) + f"""
                s_waitcnt vmcnt(0)
                s_add_u32 s38, s38, 1
                s_cmp_ge_u32 s38, 0x40000
                s_cbranch_scc1 {labr}
                {chk}
                s_cbranch_scc0 {labs}
                s_branch {labr}
                """)
            F = [f]
            for st_ in (8, 4, 2):
                for i in range(st_): F.append(S(f"v_add_f32 v{G+i}, v{G+i}, v{G+i+st_}"))
            seq = f"""
            v_mov_b32 v{G+2}, v{G}
            v_mov_b32 v{G+3}, v{G+1}
            s_nop 1
            v_permlane32_swap_b32 v{G}, v{G+2}
            v_permlane32_swap_b32 v{G+1}, v{G+3}
            s_nop 1
            v_add_f32 v{G}, v{G}, v{G+2}
            v_add_f32 v{G+1}, v{G+1}, v{G+3}
            """
            F += [S(x.strip()) for x in seq.strip().split("\n")]
            F += [S(x) for x in ln_finalize(G, G+1, 2304, G+2, G+3, G+4)]
            F += [S(f"v_mul_f32 v{G+5}, -v{G+2}, v{G+4}")]
            return F
        def z2_norm():
            F = []
            for ti in range(n2):
                X = G + 8; P = ZH + 4*ti
                for d in range(4):
                    F.append(S(f"v_lshlrev_b32 v{X+2*d}, 16, v{P+d}"))
                    F.append(S(f"v_and_b32 v{X+2*d+1}, 0xffff0000, v{P+d}"))
                for e in range(8):
                    F.append(S(f"v_fma_f32 v{X+e}, v{X+e}, v{G+4}, v{G+5}"))
                for d in range(4):
                    F.append(S(f"v_cvt_pk_bf16_f32 v{P+d}, v{X+2*d}, v{X+2*d+1}"))
                F.append(S("s_nop 1"))
                F.append(S(f"v_permlane32_swap_b32 v{P}, v{P+2}"))
                F.append(S(f"v_permlane32_swap_b32 v{P+1}, v{P+3}"))
                va = 14 if (par == 0 and ti == 4) else 13
                def st(P=P, va=va):
                    k("s_nop 0")
                    T.vm(f"buffer_store_dwordx4 v[{P}:{P+3}], v{va}, s[24:27], s36 offen {st_flags}", "z2s")
                    k("s_add_u32 s36, s36, 2048")
                F.append(st)
            return F
        def run(mf, fillers):
            groups = [mf[i:i+cl] for i in range(0, len(mf), cl)]
            ng = len(groups)
            for i, grp in enumerate(groups):
                if prio: k("s_setprio 1")
                for (m, post) in grp: m()
                if prio: k("s_setprio 0")
                for (m, post) in grp:
                    if post: post()
                rem = ng - i
                cnt = -(-len(fillers) // rem)
                for _ in range(cnt):
                    if fillers: fillers.pop(0)()
            while fillers: fillers.pop(0)()
        nb = [0]
        def barrier(upto):
            T.wait_all_l()
            if upto is not None: T.wait_v(*[("u", u) for u in range(min(upto, 17)+1)])
            k("s_barrier")
            if prof: k(f"s_memtime s[{48+2*nb[0]}:{49+2*nb[0]}]")
            nb[0] += 1
        def mstep(ti, m, cross=True):
            g = m + PD
            def post():
                if ti > 0 and m < H and g >= 9: return
                if g < 18: wread(ti, g)
                elif ti + 1 < 9 and cross: wread(ti+1, g-18)
                if m == 10: wread_ext(ti)
            return (lambda: mfma(ti, m), post)
        barrier(1)
        for m in range(PD): wread(0, m)
        for m in range(18):
            if m + AL < 18: aload(m + AL)
            elif m + AL - 18 < 4: dma_unit8(2 + m + AL - 18)
            mm, post = mstep(0, m, cross=False)
            mm(); post()
            for d in range(4):
                r = A + 4*m + d
                k(f"v_dot2c_f32_bf16 v{G + d}, v{r}, v28")
                k(f"v_dot2c_f32_bf16 v{G + 4 + d}, v{r}, v{r}")
        k(f"""
        s_nop 2
        v_add_f32 v{G}, v{G}, v{G+1}
        v_add_f32 v{G+2}, v{G+2}, v{G+3}
        v_add_f32 v{G+4}, v{G+4}, v{G+5}
        v_add_f32 v{G+6}, v{G+6}, v{G+7}
        v_add_f32 v{G}, v{G}, v{G+2}
        v_add_f32 v{G+4}, v{G+4}, v{G+6}
        """)
        for f in half_reduce_write(G, G+4, G+1, G+5, "lnw"): f()
        barrier(2)
        for m in range(PD): wread(1, m)
        lf = ln2_final()
        hd = [mstep(1, m) for m in range(H)]
        run(hd[:2], lf)
        mfma_ext(0)
        run(hd[2:4], dma_unit4(7, 0) + dma_unit4(6, 1) + [S("s_nop 7")])
        for f in send(0): f()
        run(hd[4:], [])
        for i in range(1, 9):
            barrier(2*i+2)
            for g in range(9, H+PD): wread(i, g)
            ux, uy = 2*i+5, 2*i+6
            if i == 1: ux = None
            ep = epilogue(i-1)
            early = ep[:2]
            dx = dma_unit4(ux, 0) if (ux is not None and ux < 18) else []
            dy = dma_unit4(uy, 1) if uy < 18 else []
            rest = ep[2:] if not noepi else []
            if i - 1 == n2 - 1: rest = rest + pub1()
            if i - 1 == n2:
                p2 = pub2(); early = early + p2[:1]; rest = p2[1:] + rest
            if i == 7: rest = rest + poll_issue()
            if i == 8: rest = rest[:40] + poll_check() + rest[40:] + z2_norm()
            mf = [mstep(i, m) for m in range(H, 18)]
            def mix(d, r):
                if not d: return r
                per = max(1, len(r)//len(d)); out = []
                while d:
                    out.append(d.pop(0)); out += r[:per]; r = r[per:]
                return out + r
            for f in early: f()
            if i + 1 < 9:
                mf2 = [(lambda i=i: mfma_ext(i), None)] + [mstep(i+1, m) for m in range(0, H)]
                tot = len(rest)
                n1 = (tot*5)//16; n2_ = (tot*11)//16
                run(mf[:2], dx[:2])
                run(mf[2:7], mix(dx[2:], rest[:n1]))
                run(mf[7:], mix(dy, rest[n1:n2_]))
                f2 = rest[n2_:]
                run(mf2[:3], f2[:12] + [S("s_nop 7")]*(0 if len(f2) >= 10 else 1))
                run(mf2[3:], send(i) + f2[12:])
            else:
                run(mf[:2], [])
                run(mf[2:], rest[:80])
                mfma_ext(i)
                for f in rest[80:96]: f()
                for f in send(i): f()
                for f in rest[96:]: f()
        barrier(None)
        if stamp: stamp_end(k, 24, 3, vt=25)
        for f in epilogue(8): f()
        if prof:
            k("s_memtime s[72:73]\ns_waitcnt lgkmcnt(0)")
            k("s_lshl_b32 s92, s2, 9\ns_lshl_b32 s93, s3, 6\ns_add_u32 s92, s92, s93\ns_add_u32 s92, s92, 0xF100000\nv_mov_b32 v29, 0")
            for i in range(13):
                k(f"s_sub_u32 s93, s{48+2*i}, s84\nv_mov_b32 v30, s93\nbuffer_store_dword v30, v29, s[24:27], s92 offen offset:{4*i}")
        k("s_endpgm")
        for s_ in slow: k(s_)
    variant(0)
    k(f"{n}_odd:")
    variant(1)
    k(f"""
    {n}_end:
    s_endpgm
    """)
    return k

if __name__ == "__main__":
    k = gemm1(stamp=True, prof=True, prio=False); write_file("t_g1.s", [k], [k])
    k = gemm1(stamp=True, prof=True, prio=False, nodma=True); write_file("t_g1_e.s", [k], [k])
    k = gemm1(stamp=True, prof=False, prio=False); write_file("t_g1_np.s", [k], [k])
```

```python
from asmlib import *
from layouts import *

def srd(k, s, lo, hi, nbytes):
    k(f"""
    s_mov_b32 s{s}, s{lo}
    s_and_b32 s{s+1}, s{hi}, 0xffff
    s_mov_b32 s{s+2}, {nbytes}
    s_mov_b32 s{s+3}, 0x20000
    """)

def stamp_begin(k):
    k("s_memtime s[84:85]\ns_memrealtime s[86:87]")
def stamp_end(k, ws, wavereg, vt=25):
    k(f"""
    s_memtime s[88:89]
    s_memrealtime s[90:91]
    s_waitcnt lgkmcnt(0)
    s_sub_u32 s92, s90, s86
    s_sub_u32 s93, s88, s84
    v_mov_b32 v{vt+1}, s92
    v_mov_b32 v{vt+2}, s93
    s_lshl_b32 s92, s2, 6
    s_lshl_b32 s93, s{wavereg}, 3
    s_add_u32 s92, s92, s93
    v_mov_b32 v{vt}, s92
    s_mov_b32 s93, 0xF000000
    buffer_store_dwordx2 v[{vt+1}:{vt+2}], v{vt}, s[{ws}:{ws+3}], s93 offen
    """)

def gemm2(st_flags="", noload=False, nomfma=False, noread=False, stamp=False, pf=0, pfmode=64, small=0):
    SLOT = 34816; NS = 4
    k = Kernel("g2_kernel", 256, 512, lds=SLOT*NS, vgpr=256, sgpr=96)
    n = "g2"
    k(f"""
    s_cmp_ge_u32 s2, 256
    s_cbranch_scc1 {n}_end
    s_load_dwordx4 s[4:7], s[0:1], 88
    s_load_dwordx2 s[8:9], s[0:1], 128     ; ws
    """)
    if stamp: stamp_begin(k)
    k(f"""
    v_lshrrev_b32 v1, 6, v0
    v_and_b32 v2, 63, v0                   ; lane
    s_and_b32 s10, s2, 7                   ; x
    v_readfirstlane_b32 s3, v1             ; wave
    s_lshr_b32 s11, s2, 3                  ; y
    s_and_b32 s12, s10, 1
    s_lshl_b32 s12, s12, 3
    s_and_b32 s13, s11, 7
    s_add_u32 s12, s12, s13                ; tbk
    s_lshr_b32 s13, s10, 1
    s_lshl_b32 s13, s13, 2
    s_lshr_b32 s14, s11, 3
    s_add_u32 s13, s13, s14                ; j
    {"s_and_b32 s12, s12, 0x9" if small else ""}
    {"s_and_b32 s13, s13, 0xd" if small else ""}
    {"s_and_b32 s12, s12, 0x8" if small==2 else ""}
    {"s_and_b32 s13, s13, 0xc" if small==2 else ""}
    s_waitcnt lgkmcnt(0)
    """)
    srd(k, 16, 4, 5, 2048*2048*2)
    srd(k, 20, 6, 7, 4096)
    srd(k, 24, 8, 9, 0x10000000)
    k(f"""
    s_cmp_ge_u32 s3, 4
    s_cbranch_scc1 {n}_loader
    """)
    ACC = 128; F0 = 32; F1 = 76; Z1R = 200
    k(f"""
    v_and_b32 v3, 15, v2                   ; j16
    v_lshrrev_b32 v4, 4, v2                ; kq / q
    v_lshlrev_b32 v5, 4, v2                ; lane*16
    v_lshlrev_b32 v25, 3, v2               ; lane*8
    s_lshl_b32 s28, s12, 3
    s_lshl_b32 s29, s3, 1
    s_add_u32 s28, s28, s29
    s_mul_i32 s29, s28, 72
    s_mul_i32 s30, s13, 9
    s_lshr_b32 s30, s30, 1                 ; KB0
    s_add_u32 s29, s29, s30
    s_lshl_b32 s29, s29, 10
    s_add_u32 s30, s29, {WS_Z1}
    s_add_u32 s31, s30, {72*1024}          ; tt=1
    s_add_u32 s32, s29, {WS_P}
    s_add_u32 s33, s32, {72*1024}
    s_add_u32 s34, s30, 4096
    s_add_u32 s35, s31, 4096
    s_lshl_b32 s36, s28, 5
    v_lshlrev_b32 v6, 1, v3
    buffer_load_ushort v7, v6, s[20:23], s36 offen
    buffer_load_ushort v8, v6, s[20:23], s36 offen offset:32
    """)
    for tt in range(2):
        for u in range(5):
            r = Z1R + tt*20 + u*4
            so = (30 + tt) if u < 4 else (34 + tt)
            off = u*1024 if u < 4 else 0
            k(f"buffer_load_dwordx4 v[{r}:{r+3}], v5, s[24:27], s{so} offen offset:{off}")
    k(f"""
    s_lshl_b32 s37, s3, 11                 ; cw*2048
    v_add_u32 v9, s37, v5
    v_add_u32 v23, 8192, v9                ; kb1
    """)
    for s in range(NS):
        k(f"""
        v_add_u32 v{10+s}, {s*SLOT}, v25
        v_add_u32 v{14+2*s}, {s*SLOT+18432}, v9
        v_add_u32 v{15+2*s}, {s*SLOT+18432}, v23
        """)
    k("""
    s_waitcnt vmcnt(10)
    v_lshlrev_b32 v7, 16, v7
    v_lshlrev_b32 v8, 16, v8
    """)
    for fb in range(9):
        for tt in range(2):
            for r in range(4):
                k(f"v_mov_b32 v{ACC + (fb*2+tt)*4 + r}, v{7+tt}")
    def reads(slot, kb, F):
        L = []
        def z(fb):
            r = F + 8 + fb*4
            L.append(f"ds_read_b64_tr_b16 v[{r}:{r+1}], v{10+slot} offset:{(kb*9+fb)*1024}")
            L.append(f"ds_read_b64_tr_b16 v[{r+2}:{r+3}], v{10+slot} offset:{(kb*9+fb)*1024+512}")
        L.append(f"ds_read_b128 v[{F}:{F+3}], v{14+2*slot+kb}")
        z(0)
        L.append(f"ds_read_b128 v[{F+4}:{F+7}], v{14+2*slot+kb} offset:1024")
        for fb in range(1, 9): z(fb)
        return L
    def half(F, rd):
        i = 0
        for fb in range(9):
            for tt in range(2):
                a = ACC + (fb*2+tt)*4
                z = F + 8 + fb*4; w = F + tt*4
                if not nomfma:
                    k(f"v_mfma_f32_16x16x32_bf16 v[{a}:{a+3}], v[{z}:{z+3}], v[{w}:{w+3}], v[{a}:{a+3}]")
                for _ in range(2 if i < 12 else 1):
                    if i < len(rd):
                        if not noread: k(rd[i])
                        i += 1
        k("s_waitcnt lgkmcnt(0)")
    k("s_barrier")
    for r in reads(0, 0, F0):
        k(r)
    k(f"""
    s_waitcnt lgkmcnt(0)
    s_mov_b32 s38, 0
    {n}_cloop:
    """)
    for s in range(NS):
        half(F0, reads(s, 1, F1))
        k("s_barrier")
        half(F1, reads((s+1) % NS, 0, F0))
    k(f"""
    s_add_u32 s38, s38, 1
    s_cmp_lt_u32 s38, 8
    s_cbranch_scc1 {n}_cloop
    """)
    if stamp: stamp_end(k, 24, 3)
    k(f"""
    s_waitcnt vmcnt(0)
    s_nop 7
    v_add_u32 v24, 4096, v5
    s_and_b32 s39, s13, 1
    s_cmp_eq_u32 s39, 1
    s_cbranch_scc1 {n}_epi_odd
    """)
    def epi(odd):
        for tt in range(2):
            for u in range(5):
                fbs = [2*u - odd, 2*u + 1 - odd]
                zr = Z1R + tt*20 + u*4
                T = F0 + (u % 2)*16
                for hf in range(2):
                    fb = fbs[hf]
                    if fb < 0 or fb > 8: continue
                    a = ACC + (fb*2+tt)*4
                    for d in range(2):
                        z = zr + hf*2 + d
                        k(f"""
                        v_lshlrev_b32 v{T+0}, 16, v{z}
                        v_and_b32 v{T+1}, 0xffff0000, v{z}
                        v_mul_f32 v{T+0}, v{T+0}, v{a+2*d}
                        v_mul_f32 v{T+1}, v{T+1}, v{a+2*d+1}
                        v_cvt_pk_bf16_f32 v{T+8+hf*2+d}, v{T+0}, v{T+1}
                        """)
                so = 32 + tt
                if u < 4: off = u*1024; va = 5
                else: off = 0; va = 24
                if fbs[0] >= 0 and fbs[1] <= 8:
                    k(f"buffer_store_dwordx4 v[{T+8}:{T+11}], v{va}, s[24:27], s{so} offen offset:{off} {st_flags}")
                elif fbs[0] < 0:
                    k(f"buffer_store_dwordx2 v[{T+10}:{T+11}], v{va}, s[24:27], s{so} offen offset:{off+8} {st_flags}")
                else:
                    k(f"buffer_store_dwordx2 v[{T+8}:{T+9}], v{va}, s[24:27], s{so} offen offset:{off} {st_flags}")
        k("s_endpgm")
    epi(0)
    k(f"{n}_epi_odd:")
    epi(1)
    k(f"""
    {n}_loader:
    s_sub_u32 s3, s3, 4                    ; lw
    v_lshlrev_b32 v14, 4, v2               ; lane*16
    v_add_u32 v15, 4096, v14
    s_mul_i32 s30, s13, {64*9*1024}
    s_mul_i32 s31, s3, 4608
    s_add_u32 s30, s30, s31
    s_add_u32 s30, s30, {WS_Z2}
    s_lshl_b32 s32, s12, 19                ; tbk*512KB
    s_lshl_b32 s33, s3, 12
    s_add_u32 s32, s32, s33
    s_add_u32 s32, s32, {WS_WS}            ; W soffset
    s_lshl_b32 s33, s3, 12
    s_add_u32 s33, s33, 18432
    s_mov_b32 s34, s31
    s_mov_b64 s[40:41], exec
    s_mov_b32 s42, -1
    s_mov_b32 s43, 0
    """)
    PFN = 1 if pf else 0
    if pf:
        g = pfmode
        nW = 2048 // g; nZ = 1152 // g
        k(f"""
        s_lshr_b32 s58, s11, 3                 ; j_local
        s_and_b32 s59, s11, 7                  ; tb_local
        s_and_b32 s66, s3, 1
        s_lshl_b32 s65, s12, 19
        s_lshl_b32 s67, s58, 12
        s_add_u32 s65, s65, s67
        s_lshl_b32 s67, s66, 11
        s_add_u32 s65, s65, s67
        s_add_u32 s60, s65, {WS_WS}
        ; Z
        s_mul_i32 s65, s13, {64*9*1024}
        s_mul_i32 s67, s59, 2304
        s_add_u32 s65, s65, s67
        s_mul_i32 s67, s66, 1152
        s_add_u32 s65, s65, s67
        s_add_u32 s61, s65, {WS_Z2}
        s_cmp_lt_u32 s3, 2
        s_movk_i32 s64, 16384
        s_cselect_b32 s64, s64, 18432
        s_cselect_b32 s71, {nW}, {nZ}
        s_cselect_b32 s60, s60, s61
        v_mul_u32_u24 v28, {g}, v2
        v_cmp_gt_u32 s[72:73], s71, v2
        s_lshl_b32 s68, s64, 2
        s_add_u32 s68, s68, s60
        """)
    def prefetch():
        k("""
        s_mov_b64 exec, s[72:73]
        buffer_load_dword v31, v28, s[24:27], s68 offen
        s_mov_b64 exec, s[40:41]
        s_add_u32 s68, s68, s64
        """)
    def issue(slot):
        if noload: return
        k(f"""
        s_add_u32 m0, s33, {slot*SLOT}
        s_nop 0
        """)
        for i in range(4):
            k(f"buffer_load_dwordx4 v14, s[24:27], s32 offen offset:{1024*i} lds")
        k(f"""
        s_add_u32 m0, s34, {slot*SLOT}
        s_add_u32 s32, s32, 16384
        """)
        for i in range(4):
            k(f"buffer_load_dwordx4 v14, s[24:27], s30 offen offset:{1024*i} lds")
        k(f"""
        s_add_u32 m0, s34, {slot*SLOT+4096}
        s_mov_b64 exec, s[42:43]
        buffer_load_dwordx4 v15, s[24:27], s30 offen lds
        s_mov_b64 exec, s[40:41]
        s_add_u32 s30, s30, 18432
        """)
    ops = []
    def do_issue(st):
        issue(st % NS); ops.extend([("d", st)]*9)
    def do_pf(st):
        if pf and st < 32:
            prefetch(); ops.append(("p", st))
    def wait_stage(st):
        last = max(i for i, o in enumerate(ops) if o == ("d", st))
        nn = len(ops) - 1 - last
        k(f"s_waitcnt vmcnt({min(nn,63)})")
    do_issue(0)
    nextpf = 4
    do_issue(1)
    if pf:
        for st in range(4, pf): do_pf(st)
        nextpf = pf
    do_issue(2); do_issue(3)
    wait_stage(0)
    k("s_barrier")
    for s in range(32):
        if s + 1 < 32: wait_stage(s+1)
        k("s_barrier")
        do_pf(nextpf); nextpf += 1
        if s + 4 < 32: do_issue(s+4)
    k(f"""
    {n}_end:
    s_endpgm
    """)
    return k

if __name__ == "__main__":
    k = gemm2(stamp=True); write_file("t_g2.s", [k], [k])
    k = gemm2(stamp=True, small=1); write_file("t_g2_s1.s", [k], [k])
```

```python
from asmlib import *
from layouts import *
from k_gemm2 import srd, stamp_begin, stamp_end

def gemm3(stamp=False, depth=3):
    k = Kernel("g3_kernel", 256, 256, lds=81920, vgpr=256, sgpr=96)
    n = "g3"
    k(f"""
    s_cmp_ge_u32 s2, 256
    s_cbranch_scc1 {n}_end
    s_load_dwordx2 s[4:5], s[0:1], 112     ; out
    s_load_dwordx2 s[8:9], s[0:1], 128     ; ws
    """)
    if stamp: stamp_begin(k)
    k(f"""
    v_lshrrev_b32 v1, 6, v0
    v_and_b32 v2, 63, v0                   ; lane
    s_and_b32 s10, s2, 7                   ; x
    v_readfirstlane_b32 s3, v1             ; wave
    s_lshr_b32 s11, s2, 3                  ; y
    s_lshr_b32 s12, s10, 1
    s_lshl_b32 s12, s12, 3
    s_and_b32 s13, s11, 7
    s_add_u32 s12, s12, s13                ; tb64
    s_and_b32 s13, s10, 1
    s_lshl_b32 s13, s13, 2
    s_lshr_b32 s14, s11, 3
    s_add_u32 s13, s13, s14                ; col
    s_mul_i32 s14, s13, 9
    s_add_u32 s14, s14, 1
    s_lshr_b32 s14, s14, 1                 ; D0
    v_lshlrev_b32 v5, 4, v2                ; lane*16
    s_mul_i32 s15, s12, {4*72*1024}
    s_add_u32 s15, s15, {WS_P}
    s_mul_i32 s28, s14, {72*1024}
    s_add_u32 s28, s28, {WS_W3}
    s_mul_i32 s29, s3, {18*1024}
    """)
    for tt in range(4):
        k(f"v_add_u32 v{8+tt}, s15, v5")
        k(f"s_add_u32 s15, s15, {72*1024}")
    for dd in range(5):
        k(f"v_add_u32 v{12+dd}, s28, v5")
        k(f"s_add_u32 s28, s28, {72*1024}")
    k("s_waitcnt lgkmcnt(0)")
    srd(k, 16, 4, 5, 2048*576*2)
    srd(k, 24, 8, 9, 0x10000000)
    k(f"""
    v_and_b32 v3, 15, v2
    v_lshrrev_b32 v4, 4, v2
    s_lshl_b32 s30, s12, 1
    s_lshr_b32 s31, s3, 1
    s_add_u32 s30, s30, s31                ; tb32
    s_mul_i32 s30, s30, 36
    s_add_u32 s30, s30, s14
    s_lshl_b32 s30, s30, 10
    s_add_u32 s30, s30, {WS_HF}
    s_and_b32 s31, s3, 1
    s_lshl_b32 s31, s31, 8                 ; (w&1)*16 rows *16B
    s_add_u32 s30, s30, s31
    v_lshrrev_b32 v6, 1, v4
    v_lshlrev_b32 v6, 9, v6                ; (q>>1)*512
    v_and_b32 v7, 1, v4
    v_lshlrev_b32 v7, 3, v7
    v_add_u32 v6, v6, v7
    v_lshlrev_b32 v7, 4, v3
    v_add_u32 v6, v6, v7
    s_lshl_b32 s32, s12, 6
    s_lshl_b32 s33, s3, 4
    s_add_u32 s32, s32, s33
    v_add_u32 v7, s32, v3
    s_movk_i32 s33, 1152
    v_mul_lo_u32 v7, v7, s33
    v_lshlrev_b32 v17, 3, v4
    v_add_u32 v7, v7, v17
    s_lshl_b32 s33, s14, 5
    s_and_b32 s34, s13, 1
    s_cmp_eq_u32 s34, 1
    s_cbranch_scc1 {n}_v4
    """)
    ACC = 160; SET = 40; RES = 20
    def body(nd):
        nf = 4 + nd
        def loads(st):
            F = SET + (st % depth)*36
            off = 0
            order = []
            for i in range(max(4, nd)):
                if i < nd: order.append(("w", i))
                if i < 4: order.append(("p", i))
            for (ty, i) in order:
                if ty == "p":
                    r = F + i*4; va = 8 + i
                else:
                    r = F + 16 + i*4; va = 12 + i
                k(f"buffer_load_dwordx4 v[{r}:{r+3}], v{va}, s[24:27], s29 offen")
            k("s_add_u32 s29, s29, 1024")
        for st in range(depth - 1):
            loads(st)
        for dd in range(nd):
            k(f"buffer_load_dwordx2 v[{RES+2*dd}:{RES+2*dd+1}], v6, s[24:27], s30 offen offset:{dd*1024 if dd < 4 else 0}" if dd < 4 else
              f"s_add_u32 s35, s30, 4096\nbuffer_load_dwordx2 v[{RES+2*dd}:{RES+2*dd+1}], v6, s[24:27], s35 offen")
        issued_after = {}
        ops = [("s", st) for st in range(depth-1) for _ in range(nf)] + [("r", 0)]*nd
        for st in range(18):
            if st + depth - 1 < 18:
                loads(st + depth - 1); ops += [("s", st+depth-1)]*nf
            last = max(i for i, o in enumerate(ops) if o == ("s", st))
            k(f"s_waitcnt vmcnt({len(ops)-1-last})")
            F = SET + (st % depth)*36
            for dd in range(nd):
                for tt in range(4):
                    a = ACC + (dd*4+tt)*4
                    w = F + 16 + dd*4; p = F + tt*4
                    c = f"v[{a}:{a+3}]" if st > 0 else "0"
                    k(f"v_mfma_f32_16x16x32_bf16 v[{a}:{a+3}], v[{w}:{w+3}], v[{p}:{p+3}], {c}")
        if stamp: stamp_end(k, 24, 3, vt=35)
        k(f"""
        s_mul_i32 s36, s3, 20480
        v_add_u32 v18, s36, v5
        s_mul_i32 s36, s3, 5120
        v_add_u32 v19, s36, v5
        v_add_u32 v34, 40960, v19
        s_nop 4
        """)
        for tt in range(4):
            for dd in range(nd):
                a = ACC + (dd*4+tt)*4
                k(f"ds_write_b128 v18, v[{a}:{a+3}] offset:{(tt*5+dd)*1024}")
        k("""
        s_waitcnt lgkmcnt(0)
        s_barrier
        """)
        for dd in range(nd):
            for w in range(4):
                r = SET + (dd*4+w)*4
                k(f"ds_read_b128 v[{r}:{r+3}], v{19 if w < 2 else 34} offset:{(w%2)*20480 + dd*1024}")
        for dd in range(nd):
            k(f"s_waitcnt lgkmcnt({min(15,(nd-1-dd)*4)})")
            r = SET + dd*16
            for i in range(4):
                k(f"v_add_f32 v{r+i}, v{r+i}, v{r+4+i}")
                k(f"v_add_f32 v{r+8+i}, v{r+8+i}, v{r+12+i}")
            for i in range(4):
                k(f"v_add_f32 v{r+i}, v{r+i}, v{r+8+i}")
            h = RES + 2*dd
            k(f"""
            v_cvt_pk_bf16_f32 v{r+4}, v{r}, v{r+1}
            v_cvt_pk_bf16_f32 v{r+5}, v{r+2}, v{r+3}
            v_lshlrev_b32 v{r+8}, 16, v{h}
            v_and_b32 v{r+9}, 0xffff0000, v{h}
            v_lshlrev_b32 v{r+10}, 16, v{h+1}
            v_and_b32 v{r+11}, 0xffff0000, v{h+1}
            v_lshlrev_b32 v{r}, 16, v{r+4}
            v_and_b32 v{r+1}, 0xffff0000, v{r+4}
            v_lshlrev_b32 v{r+2}, 16, v{r+5}
            v_and_b32 v{r+3}, 0xffff0000, v{r+5}
            v_add_f32 v{r}, v{r}, v{r+8}
            v_add_f32 v{r+1}, v{r+1}, v{r+9}
            v_add_f32 v{r+2}, v{r+2}, v{r+10}
            v_add_f32 v{r+3}, v{r+3}, v{r+11}
            v_cvt_pk_bf16_f32 v{r+4}, v{r}, v{r+1}
            v_cvt_pk_bf16_f32 v{r+5}, v{r+2}, v{r+3}
            buffer_store_dwordx2 v[{r+4}:{r+5}], v7, s[16:19], s33 offen offset:{dd*32}
            """)
        k("s_endpgm")
    body(5)
    k(f"{n}_v4:")
    body(4)
    k(f"""
    {n}_end:
    s_endpgm
    """)
    return k

if __name__ == "__main__":
    k = gemm3(stamp=True); write_file("t_g3.s", [k], [k])
```

```python
import math, struct
from asmlib import *
from layouts import *
from k_gemm2 import srd, stamp_begin, stamp_end
from k_gemm1_v2 import f2u, ln_finalize

L2E = math.log2(math.e)
def H(x): return hex(f2u(x))

def ssm(stamp=False, dbg=False, st_flags="", prof=False):
    REG = 18432
    UB = 4*REG
    KE = 4608; KO = KE + 4160
    k = Kernel("k0_kernel", 256, 256, lds=147456, vgpr=256, sgpr=96)
    n = "k0"
    k(f"""
    s_cmp_ge_u32 s2, 256
    s_cbranch_scc1 {n}_end
    s_load_dwordx16 s[4:19], s[0:1], 0
    s_load_dwordx2 s[20:21], s[0:1], 64
    s_load_dwordx2 s[22:23], s[0:1], 80
    s_load_dwordx2 s[24:25], s[0:1], 88
    s_load_dwordx2 s[26:27], s[0:1], 104
    s_load_dwordx2 s[28:29], s[0:1], 120
    s_load_dwordx2 s[30:31], s[0:1], 128
    """)
    if stamp: stamp_begin(k)
    k(f"""
    v_lshrrev_b32 v2, 6, v0
    v_and_b32 v1, 63, v0
    s_nop 0
    v_readfirstlane_b32 s3, v2
    s_waitcnt lgkmcnt(0)
    """)
    srd(k, 32, 4, 5, 2048*1152)
    srd(k, 36, 30, 31, 0x10000000)
    k(f"""
    s_cmp_ge_u32 s2, 144
    s_cbranch_scc1 {n}_pack
    """)
    np_ = [0]
    def pstamp():
        if prof:
            k(f"s_memtime s[{60+2*np_[0]}:{61+2*np_[0]}]\ns_waitcnt lgkmcnt(0)"); np_[0] += 1
    XR = 224
    UD = 240
    k(f"""
    s_lshl_b32 s40, s2, 2
    s_add_u32 s40, s40, s3                 ; d
    s_lshl_b32 s41, s40, 8
    v_lshlrev_b32 v2, 1, v1
    v_add_u32 v2, s41, v2
    s_lshl_b32 s41, s40, 1
    v_mov_b32 v3, s41
    global_load_ushort v4, v3, s[18:19]    ; log_dt
    """)
    for a in range(6):
        for p in range(2):
            k(f"global_load_ushort v{8+2*a+p}, v2, s[{6+2*a}:{7+2*a}] offset:{128*p}")
    k(f"""
    s_lshl_b32 s41, s2, 3
    s_load_dwordx2 s[44:45], s[20:21], s41 ; Dskip x4
    s_lshl_b32 s42, s3, 9
    v_add_u32 v5, s42, v1                  ; t0 = 512w + L
    s_movk_i32 s42, 1152
    v_mul_lo_u32 v6, v5, s42
    """)
    for i in range(8):
        k(f"buffer_load_dwordx2 v[{XR+2*i}:{XR+2*i+1}], v6, s[32:35], s41 offen")
        if i < 7: k(f"s_add_u32 s41, s41, {64*1152}")
    k(f"""
    s_mul_i32 s43, s3, {REG}
    v_lshlrev_b32 v7, 2, v1
    v_add_u32 v7, s43, v7
    v_and_b32 v20, 15, v1                  ; idx
    v_lshrrev_b32 v21, 4, v1               ; kq
    s_movk_i32 s42, 288
    v_mul_lo_u32 v22, v20, s42
    v_lshlrev_b32 v23, 4, v21
    v_add_u32 v22, v22, v23
    v_add_u32 v22, s43, v22
    s_mul_i32 s46, s3, 4608
    s_add_u32 s46, s46, {UB}
    v_mov_b32 v24, 0
    v_mov_b32 v25, 0
    v_lshlrev_b32 v23, 3, v1
    v_add_u32 v23, s46, v23
    ds_write_b64 v23, v[24:25]
    s_waitcnt vmcnt(8)
    v_lshlrev_b32 v4, 16, v4
    v_mul_f32 v4, {H(L2E)}, v4
    v_exp_f32 v4, v4
    """)
    for r in range(8, 20): k(f"v_lshlrev_b32 v{r}, 16, v{r}")
    k(f"""
    v_cvt_pk_bf16_f32 v4, v4, v4
    v_and_b32 v4, 0xffff0000, v4           ; dt
    """)
    for p in range(2):
        Ar, Ai, Br, Bi, Cr, Ci = [8+2*a+p for a in range(6)]
        k(f"""
        v_mul_f32 v{26+p}, v4, v{Ar}
        v_mul_f32 v{28+p}, v4, v{Ai}
        v_mul_f32 v{Br}, v4, v{Br}
        v_mul_f32 v{Bi}, v4, v{Bi}
        v_mul_f32 v{26+p}, {H(L2E)}, v{26+p}
        v_mul_f32 v{28+p}, {H(1/(2*math.pi))}, v{28+p}
        v_mul_f32 v{30+p}, v{Cr}, v{Br}
        v_mul_f32 v{32+p}, v{Cr}, v{Bi}
        v_fma_f32 v{30+p}, -v{Ci}, v{Bi}, v{30+p}
        v_fma_f32 v{32+p}, v{Ci}, v{Br}, v{32+p}
        """)
    k(f"""
    v_max3_f32 v34, |v30|, |v31|, |v32|
    v_max_f32 v34, v34, |v33|
    s_nop 1
    """)
    for mode in ("quad_perm:[1,0,3,2]", "quad_perm:[2,3,0,1]", "row_half_mirror", "row_mirror"):
        k(f"v_max_f32_dpp v34, v34, v34 {mode} row_mask:0xf bank_mask:0xf\ns_nop 1")
    k(f"""
    v_mov_b32 v35, v34
    s_nop 1
    v_permlane16_swap_b32 v34, v35
    s_nop 1
    v_max_f32 v34, v34, v35
    v_mov_b32 v35, v34
    s_nop 1
    v_permlane32_swap_b32 v34, v35
    s_nop 1
    v_max_f32 v34, v34, v35
    v_frexp_exp_i32_f32 v34, v34           ; e
    v_sub_u32 v35, 0, v34
    v_ldexp_f32 v30, v30, v35
    v_ldexp_f32 v31, v31, v35
    v_ldexp_f32 v32, v32, v35
    v_ldexp_f32 v33, v33, v35
    v_mov_b32 v36, 0x3c00                  ; (1,0) in f16
    """)
    pstamp()
    P = {c: 40 + 2*c for c in range(1, 8)}
    Q = {a: 56 + 2*a for a in range(1, 9)}
    W8 = 74; XA = 76; XB = 78; TA = 80; TB = 82; PKT = [84, 85, 86, 87]
    KACC = 88
    FR = 100
    pk = [0]
    def cmul(d, a, b):
        k(f"""
        v_mul_f32 v{d}, v{a}, v{b}
        v_mul_f32 v{d+1}, v{a}, v{b+1}
        v_fma_f32 v{d}, -v{a+1}, v{b+1}, v{d}
        v_fma_f32 v{d+1}, v{a+1}, v{b}, v{d+1}
        """)
    def emit(entry, r, conj=False):
        t = PKT[pk[0] % 4]; pk[0] += 1
        k(f"v_cvt_pk_f16_f32 v{t}, v{r}, {'-' if conj else ''}v{r+1}")
        k(f"ds_write_b32 v7, v{t} offset:{entry*288}")
    def cexp(d, l, p):
        k(f"""
        v_mul_f32 v{TA}, {H(float(l))}, v{26+p}
        v_mul_f32 v{TA+1}, {H(float(l))}, v{28+p}
        v_exp_f32 v{TA}, v{TA}
        v_fract_f32 v{TA+1}, v{TA+1}
        v_cos_f32 v{d}, v{TA+1}
        v_sin_f32 v{d+1}, v{TA+1}
        s_nop 0
        v_mul_f32 v{d}, v{d}, v{TA}
        v_mul_f32 v{d+1}, v{d+1}, v{TA}
        """)
    for p in range(2):
        cexp(P[1], 1, p); cexp(W8, 8, p); cexp(Q[1], 128, p)
        k(f"v_mov_b32 v{XA}, v{30+p}\nv_mov_b32 v{XA+1}, v{32+p}")
        cur, nxt = XA, XB
        for b in range(16):
            emit(b, cur, conj=True)
            if b < 15: cmul(nxt, cur, W8); cur, nxt = nxt, cur
        cmul(P[2], P[1], P[1]); cmul(P[3], P[2], P[1]); cmul(P[4], P[2], P[2]); cmul(P[5], P[4], P[1]); cmul(P[6], P[4], P[2]); cmul(P[7], P[6], P[1])
        k(f"ds_write_b32 v7, v36 offset:{16*288}")
        for c in range(1, 8): emit(16+c, P[c])
        emit(24, Q[1])
        tt = [TA, TB]
        def prod(entry, a, b, _c=[0]):
            t = tt[_c[0] % 2]; _c[0] += 1
            cmul(t, a, b); emit(entry, t)
        for c in range(1, 8): prod(24+c, P[c], Q[1])
        cmul(Q[2], Q[1], Q[1]); cmul(Q[3], Q[2], Q[1]); cmul(Q[4], Q[2], Q[2]); cmul(Q[5], Q[4], Q[1]); cmul(Q[6], Q[4], Q[2]); cmul(Q[7], Q[6], Q[1]); cmul(Q[8], Q[4], Q[4])
        for a in range(2):
            emit(32+4*a, Q[2+a])
            for c in range(1, 4): prod(32+4*a+c, P[2*c], Q[2+a])
        for a in range(4):
            emit(40+2*a, Q[4+a])
            prod(40+2*a+1, P[4], Q[4+a])
        emit(48, Q[8])
        for a in range(1, 9): prod(48+a, Q[8], Q[a])
        k("s_waitcnt lgkmcnt(0)")
        for kb in range(4):
            for t in range(4):
                r = FR + (kb*4+t)*4
                k(f"ds_read_b128 v[{r}:{r+3}], v22 offset:{t*16*288 + kb*64}")
        for kb in range(4):
            k(f"s_waitcnt lgkmcnt({12 - 4*kb})")
            for t in range(3):
                a = KACC + 4*t; A_ = FR + kb*16; B_ = FR + (kb*4+1+t)*4
                c = f"v[{a}:{a+3}]" if (p or kb) else "0"
                k(f"v_mfma_f32_16x16x32_f16 v[{a}:{a+3}], v[{A_}:{A_+3}], v[{B_}:{B_+3}], {c}")
    pstamp()
    k(f"""
    v_and_b32 v43, 7, v20
    v_lshrrev_b32 v44, 3, v20
    v_lshl_add_u32 v40, v44, 7, v43              ; T0
    v_and_b32 v43, 3, v20
    v_lshlrev_b32 v43, 1, v43
    v_lshrrev_b32 v44, 2, v20
    v_lshl_add_u32 v41, v44, 7, v43
    v_add_u32 v41, 256, v41                      ; T1 idx<8
    v_and_b32 v43, 1, v20
    v_lshlrev_b32 v43, 2, v43
    v_lshrrev_b32 v44, 1, v20
    v_lshl_add_u32 v45, v44, 7, v43
    v_cmp_gt_u32 vcc, 8, v20
    v_lshlrev_b32 v42, 7, v20
    v_cndmask_b32 v41, v45, v41, vcc
    v_add_u32 v42, 1024, v42                     ; T2
    v_lshlrev_b32 v43, 5, v21                    ; 32q
    v_add_u32 v40, v40, v43
    v_add_u32 v41, v41, v43
    v_add_u32 v42, v42, v43
    v_cvt_f32_u32 v40, v40
    v_cvt_f32_u32 v41, v41
    v_cvt_f32_u32 v42, v42
    s_sub_u32 s47, s43, {2*0x3F00}
    v_mov_b32 v46, s47
    v_mov_b32 v47, {H(4096.0)}
    v_mov_b32 v48, 0
    s_add_u32 s48, s43, {2*0x40}
    v_mov_b32 v49, s48
    ds_write_b16 v49, v48
    """)
    for t in range(3):
        for r in range(4):
            lf = 50 + r
            k(f"v_add_f32 v{lf}, {H(8.0*r)}, v{40+t}")
            if t == 0 and r == 0: k(f"v_max_f32 v{lf}, 0.5, v{lf}")
            if t == 2:
                k(f"v_cmp_lt_f32 vcc, {H(2048.0)}, v{lf}\ns_nop 1\nv_cndmask_b32 v{lf}, v{lf}, v47, vcc")
            k(f"v_mad_u32_u16 v{lf}, v{lf}, 2, v46 op_sel:[1,0,0,0]")
            k(f"v_ldexp_f32 v{KACC+4*t+r}, v{KACC+4*t+r}, v34")
        for r in range(0, 4, 2):
            a = KACC + 4*t + r
            k(f"v_cvt_pk_bf16_f32 v{a}, v{a}, v{a+1}")
            k(f"ds_write_b16 v{50+r}, v{a}")
            k(f"ds_write_b16_d16_hi v{51+r}, v{a}")
    k(f"""
    v_lshlrev_b32 v40, 3, v1
    v_sub_u32 v40, 2047, v40
    v_cvt_f32_i32 v40, v40                       ; l for e=0, i=0
    v_lshlrev_b32 v41, 4, v1
    v_add_u32 v41, s43, v41
    v_mov_b32 v52, 0
    v_mov_b32 v53, 0
    v_mov_b32 v54, 0
    v_mov_b32 v55, 0
    v_min_u32 v42, 3, v1
    v_lshlrev_b32 v42, 4, v42
    v_add_u32 v42, s43, v42
    s_waitcnt lgkmcnt(0)
    ds_write_b128 v42, v[52:55] offset:{KE+4096}
    ds_write_b128 v42, v[52:55] offset:{KO+4096}
    """)
    for i in range(4):
        E = 100 + i*10
        AD = 60
        for e in range(0, 10, 2):
            k(f"v_add_f32 v56, {H(-512.0*i - e)}, v40")
            k(f"v_add_f32 v57, {H(-512.0*i - e - 1)}, v40")
            if i == 3 and e in (6, 8):
                for r in (56, 57):
                    k(f"v_fma_f32 v58, v{r}, -0.5, 1.0\nv_mul_f32 v58, 0.5, v58\nv_max_f32 v{r}, v{r}, v58")
            k(f"v_cvt_pk_bf16_f32 v56, v56, v57")
            k(f"v_mad_u32_u16 v{AD+e}, v56, 2, v46")
            if e < 8: k(f"v_mad_u32_u16 v{AD+e+1}, v56, 2, v46 op_sel:[1,0,0,0]")
        for e in range(9):
            k(f"ds_read_u16 v{E+e}, v{AD+e}")
    for i in range(4):
        E = 100 + i*10; O = 144 + i*8
        k(f"s_waitcnt lgkmcnt({min(15, 9*(3-i) + 2*i)})")
        for d in range(4): k(f"v_lshl_or_b32 v{O+d}, v{E+2*d+1}, 16, v{E+2*d}")
        for d in range(4): k(f"v_lshl_or_b32 v{O+4+d}, v{E+2*d+2}, 16, v{E+2*d+1}")
        k(f"ds_write_b128 v41, v[{O}:{O+3}] offset:{KE + i*1024}")
        k(f"ds_write_b128 v41, v[{O+4}:{O+7}] offset:{KO + i*1024}")
    pstamp()
    if dbg:
        k(f"""
        s_waitcnt lgkmcnt(0)
        s_lshl_b32 s48, s40, 13
        s_add_u32 s48, s48, 0x8000000
        v_lshlrev_b32 v42, 4, v1
        """)
        for i in range(4):
            for cp, off in ((0, KE), (1, KO)):
                k(f"ds_read_b128 v[44:47], v41 offset:{off + i*1024}\ns_waitcnt lgkmcnt(0)\nbuffer_store_dwordx4 v[44:47], v42, s[36:39], s48 offen\ns_add_u32 s48, s48, 1024\ns_nop 2")
    lab = k.label("poll"); lab2 = k.label("pok")
    k(f"""
    v_and_b32 v40, 7, v1
    v_lshlrev_b32 v40, 2, v40
    s_mov_b32 s48, 0
    {lab}:
    global_load_dword v41, v40, s[28:29] sc0 sc1
    s_waitcnt vmcnt(0)
    v_cmp_ne_u32 vcc, 8, v41
    s_add_u32 s48, s48, 1
    s_cbranch_vccz {lab2}
    s_cmp_lt_u32 s48, 0x40000
    s_cbranch_scc1 {lab}
    {lab2}:
    v_lshlrev_b32 v40, 3, v5                     ; t0*8
    s_mov_b32 s48, {WS_ST1}
    """)
    SR = 100
    for i in range(8):
        k(f"buffer_load_dwordx2 v[{SR+2*i}:{SR+2*i+1}], v40, s[36:39], s48 offen offset:{512*i} sc0 sc1")
    pstamp()
    k(f"""
    v_lshlrev_b32 v41, 1, v5
    v_add_u32 v41, {UB + 512}, v41
    s_lshl_b32 s50, s44, 16
    s_and_b32 s51, s44, 0xffff0000
    s_lshl_b32 s52, s45, 16
    s_and_b32 s53, s45, 0xffff0000               ; D0..D3
    """)
    for i in range(8):
        x = XR + 2*i; m = SR + 2*i; r = m + 1
        T = 44 + (i % 2)*8
        k(f"""
        s_waitcnt vmcnt({7-i})
        v_lshlrev_b32 v{T}, 16, v{x}
        v_and_b32 v{T+1}, 0xffff0000, v{x}
        v_lshlrev_b32 v{T+2}, 16, v{x+1}
        v_and_b32 v{T+3}, 0xffff0000, v{x+1}
        v_sub_f32 v{T}, v{T}, v{m}
        v_sub_f32 v{T+1}, v{T+1}, v{m}
        v_sub_f32 v{T+2}, v{T+2}, v{m}
        v_sub_f32 v{T+3}, v{T+3}, v{m}
        v_cvt_pk_bf16_f32 v{T+4}, v{T}, v{T+1}
        v_cvt_pk_bf16_f32 v{T+5}, v{T+2}, v{T+3}
        v_lshlrev_b32 v{T}, 16, v{T+4}
        v_and_b32 v{T+1}, 0xffff0000, v{T+4}
        v_lshlrev_b32 v{T+2}, 16, v{T+5}
        v_and_b32 v{T+3}, 0xffff0000, v{T+5}
        v_mul_f32 v{T}, v{T}, v{r}
        v_mul_f32 v{T+1}, v{T+1}, v{r}
        v_mul_f32 v{T+2}, v{T+2}, v{r}
        v_mul_f32 v{T+3}, v{T+3}, v{r}
        v_cvt_pk_bf16_f32 v{UD+2*i}, v{T}, v{T+1}
        v_cvt_pk_bf16_f32 v{UD+2*i+1}, v{T+2}, v{T+3}
        ds_write_b16 v41, v{UD+2*i} offset:{128*i}
        ds_write_b16_d16_hi v41, v{UD+2*i} offset:{128*i + 4608}
        ds_write_b16 v41, v{UD+2*i+1} offset:{128*i + 2*4608}
        ds_write_b16_d16_hi v41, v{UD+2*i+1} offset:{128*i + 3*4608}
        """)
    k(f"""
    v_lshlrev_b32 v40, 3, v21                    ; 8kq
    v_sub_u32 v40, v40, v20                      ; 8kq - i
    v_add_u32 v40, {2031 - 224}, v40             ; x0 for P=0,p0=7
    v_and_b32 v41, 1, v20
    v_cmp_eq_u32 vcc, 1, v41
    v_mov_b32 v42, {KO - 2}
    v_mov_b32 v43, {KE}
    v_cndmask_b32 v42, v42, v43, vcc
    v_lshl_add_u32 v40, v40, 1, v42
    v_add_u32 v8, s43, v40                       ; vA[0]
    """)
    for Pp in range(1, 8): k(f"v_subrev_u32 v{8+Pp}, {512*Pp}, v8")
    k(f"""
    v_lshlrev_b32 v16, 5, v20
    v_lshl_add_u32 v16, v21, 4, v16
    s_add_u32 s48, s46, 32
    v_add_u32 v16, s48, v16                      ; vB
    s_waitcnt lgkmcnt(0)
    s_barrier
    """)
    pstamp()
    ACC = 24; AT = 56; BT = 120
    def rd(p0):
        s = p0 % 2; L = []
        for j in range(8):
            a = AT + s*32 + j*4; b = BT + s*32 + j*4
            o = (7-p0)*16
            L.append(f"ds_read_b128 v[{b}:{b+3}], v16 offset:{512*j + 64*(7-p0)}")
            L.append(f"ds_read2_b32 v[{a}:{a+1}], v{8+j} offset0:{o} offset1:{o+1}")
            L.append(f"ds_read2_b32 v[{a+2}:{a+3}], v{8+j} offset0:{o+2} offset1:{o+3}")
        return L
    fill = []
    for i in range(8):
        T = 184 + (i % 2)*4
        u = UD + 2*i
        fill += [f"v_lshlrev_b32 v{T}, 16, v{u}", f"v_and_b32 v{T+1}, 0xffff0000, v{u}", f"v_lshlrev_b32 v{T+2}, 16, v{u+1}", f"v_and_b32 v{T+3}, 0xffff0000, v{u+1}"]
        fill += [f"v_mul_f32 v{T+c}, s{50+c}, v{T+c}" for c in range(4)]
        fill += [f"v_cvt_pk_bf16_f32 v{u}, v{T}, v{T+1}", f"v_cvt_pk_bf16_f32 v{u+1}, v{T+2}, v{T+3}"]
    for x in rd(0): k(x)
    for p0 in range(8):
        k("s_waitcnt lgkmcnt(0)")
        nx = rd(p0+1) if p0 < 7 else []
        s = p0 % 2
        first = {}
        for cb in range(8):
            for Pp in range(cb+1):
                a = AT + s*32 + Pp*4; b = BT + s*32 + (cb-Pp)*4; c = ACC + cb*4
                src = f"v[{c}:{c+3}]" if (p0 or Pp) else "0"
                k(f"v_mfma_f32_16x16x32_bf16 v[{c}:{c+3}], v[{a}:{a+3}], v[{b}:{b+3}], {src}")
                if nx: k(nx.pop(0))
                elif fill: k(fill.pop(0))
    while fill: k(fill.pop(0))
    pstamp()
    k(f"""
    s_lshl_b32 s48, s3, 6
    s_add_u32 s48, s48, s43
    v_lshlrev_b32 v8, 5, v20
    v_lshl_add_u32 v8, v21, 3, v8
    v_add_u32 v8, s48, v8
    s_nop 4
    """)
    for cb in range(8):
        c = ACC + cb*4
        k(f"""
        v_cvt_pk_bf16_f32 v{c}, v{c}, v{c+1}
        v_cvt_pk_bf16_f32 v{c+1}, v{c+2}, v{c+3}
        ds_write_b64 v8, v[{c}:{c+1}] offset:{512*cb}
        """)
    k(f"""
    v_bfe_u32 v9, v1, 2, 2
    s_movk_i32 s48, {REG+64}
    v_mul_lo_u32 v9, v9, s48
    v_lshl_add_u32 v9, v21, 5, v9
    v_and_b32 v10, 3, v1
    v_lshl_add_u32 v9, v10, 3, v9
    s_lshl_b32 s48, s3, 10
    v_add_u32 v9, s48, v9
    v_lshrrev_b32 v10, 5, v1
    s_mov_b32 s48, 36864
    v_mul_lo_u32 v10, v10, s48
    v_and_b32 v11, 31, v1
    v_lshl_add_u32 v10, v11, 4, v10
    s_mul_i32 s48, s3, {16*36864}
    s_lshr_b32 s49, s2, 1
    s_lshl_b32 s49, s49, 9
    s_add_u32 s48, s48, s49
    s_and_b32 s49, s2, 1
    s_lshl_b32 s49, s49, 3
    s_add_u32 s48, s48, s49
    s_add_u32 s48, s48, {WS_HF}
    s_waitcnt lgkmcnt(0)
    s_barrier
    """)
    YR = 56
    for i in range(8): k(f"ds_read_b64_tr_b16 v[{YR+2*i}:{YR+2*i+1}], v9 offset:{128*i}")
    for i in range(8):
        y = YR + 2*i; u = UD + 2*i; x = XR + 2*i
        T = 80 + (i % 2)*12
        def unp(dst, src):
            k(f"v_lshlrev_b32 v{dst}, 16, v{src}\nv_and_b32 v{dst+1}, 0xffff0000, v{src}\nv_lshlrev_b32 v{dst+2}, 16, v{src+1}\nv_and_b32 v{dst+3}, 0xffff0000, v{src+1}")
        unp(T+4, u)
        k(f"s_waitcnt lgkmcnt({7-i})")
        unp(T, y)
        for c in range(4): k(f"v_add_f32 v{T+c}, v{T+c}, v{T+4+c}")
        k(f"v_cvt_pk_bf16_f32 v{T+8}, v{T}, v{T+1}\nv_cvt_pk_bf16_f32 v{T+9}, v{T+2}, v{T+3}")
        unp(T+4, x)
        unp(T, T+8)
        for c in range(4): k(f"v_add_f32 v{T+c}, v{T+c}, v{T+4+c}")
        k(f"v_cvt_pk_bf16_f32 v{T+10}, v{T}, v{T+1}\nv_cvt_pk_bf16_f32 v{T+11}, v{T+2}, v{T+3}")
        k(f"buffer_store_dwordx2 v[{T+10}:{T+11}], v10, s[36:39], s48 offen {st_flags}")
        k(f"s_add_u32 s48, s48, {2*36864}")
    if stamp: stamp_end(k, 36, 3, vt=25)
    if prof:
        k("s_lshl_b32 s92, s2, 9\ns_lshl_b32 s93, s3, 6\ns_add_u32 s92, s92, s93\ns_add_u32 s92, s92, 0xF100000\nv_mov_b32 v29, 0")
        for i in range(np_[0]):
            k(f"s_sub_u32 s93, s{60+2*i}, s84\nv_mov_b32 v30, s93\nbuffer_store_dword v30, v29, s[36:39], s92 offen offset:{4*i}")
    k("s_endpgm")
    k(f"""
    {n}_pack:
    s_sub_u32 s40, s2, 144                       ; a
    s_lshl_b32 s41, s40, 2
    s_add_u32 s41, s41, s3                       ; pw
    v_lshlrev_b32 v8, 4, v1                      ; lane*16
    s_cmp_ge_u32 s40, 64
    s_cbranch_scc1 {n}_noln
    v_lshrrev_b32 v2, 3, v1
    s_lshl_b32 s42, s41, 3
    v_add_u32 v2, s42, v2                        ; row
    s_movk_i32 s42, 1152
    v_mul_lo_u32 v3, v2, s42
    v_and_b32 v4, 7, v1
    v_lshl_add_u32 v3, v4, 4, v3
    """)
    for i in range(9): k(f"buffer_load_dwordx4 v[{32+4*i}:{35+4*i}], v3, s[32:35], 0 offen offset:{128*i}")
    k(f"""
    v_mov_b32 v12, -1
    v_mov_b32 v13, -1
    v_mov_b32 v14, -1
    v_mov_b32 v15, -1
    s_lshl_b32 s42, s41, 10
    s_add_u32 s42, s42, {WS_ST}
    buffer_store_dwordx4 v[12:15], v8, s[36:39], s42 offen
    v_mov_b32 v28, 0x3f803f80
    """)
    for r in range(8): k(f"v_mov_b32 v{16+r}, 0")
    for i in range(9):
        k(f"s_waitcnt vmcnt({9-i})")
        for d in range(4):
            r = 32 + 4*i + d
            k(f"v_dot2c_f32_bf16 v{16+d}, v{r}, v28\nv_dot2c_f32_bf16 v{20+d}, v{r}, v{r}")
    k("""
    s_nop 2
    v_add_f32 v16, v16, v17
    v_add_f32 v18, v18, v19
    v_add_f32 v20, v20, v21
    v_add_f32 v22, v22, v23
    v_add_f32 v24, v16, v18
    v_add_f32 v25, v20, v22
    s_nop 1
    """)
    for mode in ("quad_perm:[1,0,3,2]", "quad_perm:[2,3,0,1]", "row_half_mirror"):
        k(f"v_add_f32_dpp v24, v24, v24 {mode} row_mask:0xf bank_mask:0xf\nv_add_f32_dpp v25, v25, v25 {mode} row_mask:0xf bank_mask:0xf\ns_nop 1")
    for x in ln_finalize(24, 25, 576, 26, 29, 27): k(x)
    k(f"""
    v_lshlrev_b32 v2, 3, v2
    s_mov_b32 s42, {WS_ST1}
    v_cmp_eq_u32 vcc, 0, v4
    s_and_saveexec_b64 s[44:45], vcc
    buffer_store_dwordx2 v[26:27], v2, s[36:39], s42 offen sc0 sc1
    s_mov_b64 exec, s[44:45]
    s_waitcnt vmcnt(0)
    s_barrier
    s_cmp_eq_u32 s3, 0
    s_cbranch_scc0 {n}_noln
    s_and_b32 s42, s40, 7
    s_lshl_b32 s42, s42, 2
    v_mov_b32 v2, s42
    v_mov_b32 v3, 1
    s_mov_b64 exec, 1
    global_atomic_add v2, v3, s[28:29] sc1
    s_mov_b64 exec, s[44:45]
    {n}_noln:
    s_cmp_ge_u32 s41, 376
    s_cbranch_scc1 {n}_w3
    s_cmp_ge_u32 s41, 232
    s_cbranch_scc1 {n}_w1
    """)
    srd(k, 48, 24, 25, 2048*4096)
    k(f"""
    v_and_b32 v2, 15, v1
    v_lshlrev_b32 v2, 12, v2
    v_bfe_u32 v3, v1, 4, 1
    v_lshl_add_u32 v2, v3, 5, v2
    v_lshrrev_b32 v3, 5, v1
    v_lshl_add_u32 v2, v3, 4, v2                 ; j*4096 + sigma*16
    s_mul_i32 s42, s41, 36
    """)
    for i in range(36):
        k(f"""
        s_add_u32 s43, s42, {i}
        s_min_u32 s43, s43, 8191
        s_lshr_b32 s46, s43, 6
        s_lshl_b32 s46, s46, 16
        s_and_b32 s47, s43, 63
        s_lshl_b32 s47, s47, 6
        s_add_u32 s46, s46, s47
        buffer_load_dwordx4 v[{32+4*i}:{35+4*i}], v2, s[48:51], s46 offen
        """)
    for i in range(36):
        r = 32 + 4*i
        k(f"""
        s_add_u32 s43, s42, {i}
        s_min_u32 s43, s43, 8191
        s_lshr_b32 s46, s43, 9
        s_lshl_b32 s46, s46, 19                  ; tbk*512K
        s_and_b32 s47, s43, 63
        s_lshl_b32 s47, s47, 13
        s_add_u32 s46, s46, s47
        s_bfe_u32 s47, s43, 0x30006
        s_lshl_b32 s47, s47, 10
        s_add_u32 s46, s46, s47
        s_add_u32 s46, s46, {WS_WS}
        s_waitcnt vmcnt(35)
        v_permlane16_swap_b32 v{r}, v{r+2}
        v_permlane16_swap_b32 v{r+1}, v{r+3}
        s_nop 0
        buffer_store_dwordx4 v[{r}:{r+3}], v8, s[36:39], s46 offen {st_flags}
        """)
    if stamp: stamp_end(k, 36, 3, vt=25)
    k("s_endpgm")
    k(f"{n}_w1:")
    srd(k, 48, 22, 23, 576*9216)
    k(f"""
    s_sub_u32 s42, s41, 232                      ; ft
    v_lshrrev_b32 v2, 2, v1
    s_movk_i32 s43, 9216
    v_mul_lo_u32 v2, v2, s43
    v_and_b32 v3, 3, v1
    v_lshl_add_u32 v2, v3, 4, v2                 ; row*9216 + c*16
    s_lshl_b32 s43, s42, 6
    s_mul_i32 s46, s3, 36864
    """)
    for i in range(36):
        k(f"""
        s_add_u32 m0, s46, {1024*i}
        s_nop 0
        buffer_load_dwordx4 v2, s[48:51], s43 offen lds
        s_add_u32 s43, s43, {16*9216}
        """)
    k(f"""
    v_lshrrev_b32 v4, 5, v1
    v_lshlrev_b32 v4, 9, v4
    v_bfe_u32 v5, v1, 2, 2
    v_lshl_add_u32 v4, v5, 6, v4
    v_bfe_u32 v5, v1, 4, 1
    v_lshl_add_u32 v4, v5, 5, v4
    v_lshl_add_u32 v4, v3, 3, v4
    v_add_u32 v4, s46, v4
    s_mul_i32 s47, s42, {37*1024}
    s_add_u32 s47, s47, {WS_W1}
    v_mov_b32 v28, 0x3f803f80
    v_mov_b32 v16, 0
    v_mov_b32 v17, 0
    v_mov_b32 v18, 0
    v_mov_b32 v19, 0
    """)
    for i in range(36):
        r = 32 + 4*(i % 8)
        k(f"""
        s_waitcnt vmcnt(35)
        ds_read_b64_tr_b16 v[{r}:{r+1}], v4 offset:{1024*i}
        ds_read_b64_tr_b16 v[{r+2}:{r+3}], v4 offset:{1024*i+256}
        s_waitcnt lgkmcnt(0)
        buffer_store_dwordx4 v[{r}:{r+3}], v8, s[36:39], s47 offen {st_flags}
        s_add_u32 s47, s47, 1024
        """)
        for d in range(4): k(f"v_dot2c_f32_bf16 v{16+d}, v{r+d}, v28")
    k(f"""
    s_nop 2
    v_add_f32 v16, v16, v17
    v_add_f32 v18, v18, v19
    v_add_f32 v16, v16, v18
    v_mov_b32 v17, v16
    s_nop 1
    v_permlane32_swap_b32 v16, v17
    s_nop 1
    v_add_f32 v16, v16, v17
    v_sub_f32 v16, 0, v16                        ; -colsum
    v_cvt_pk_bf16_f32 v17, v16, v16
    v_and_b32 v17, 0xffff0000, v17               ; hi
    v_sub_f32 v16, v16, v17
    v_cvt_pk_bf16_f32 v18, v16, v16
    v_and_b32 v18, 0xffff0000, v18               ; mid
    v_sub_f32 v16, v16, v18
    v_cvt_pk_bf16_f32 v19, v16, v16
    v_lshrrev_b32 v17, 16, v17
    v_or_b32 v20, v17, v18
    v_and_b32 v21, 0xffff, v19
    v_cmp_gt_u32 vcc, 32, v1
    v_mov_b32 v22, 0
    v_mov_b32 v23, 0
    v_cndmask_b32 v20, 0, v20, vcc
    v_cndmask_b32 v21, 0, v21, vcc
    buffer_store_dwordx4 v[20:23], v8, s[36:39], s47 offen {st_flags}
    """)
    if stamp: stamp_end(k, 36, 3, vt=25)
    k("s_endpgm")
    k(f"{n}_w3:")
    srd(k, 48, 26, 27, 2304*1152)
    k(f"""
    s_sub_u32 s42, s41, 376                      ; KB
    s_mul_i32 s43, s42, 36864
    s_mul_i32 s46, s3, 36864
    """)
    for i in range(36):
        k(f"""
        s_add_u32 m0, s46, {1024*i}
        s_nop 0
        buffer_load_dwordx4 v8, s[48:51], s43 offen lds
        s_add_u32 s43, s43, 1024
        """)
    k(f"""
    v_lshrrev_b32 v4, 2, v1
    s_movk_i32 s47, 1152
    v_mul_lo_u32 v4, v4, s47
    v_and_b32 v5, 3, v1
    v_lshl_add_u32 v4, v5, 3, v4
    v_add_u32 v4, s46, v4
    s_lshl_b32 s47, s42, 10
    s_add_u32 s47, s47, {WS_W3}
    s_waitcnt vmcnt(0)
    """)
    for i in range(36):
        r = 32 + 4*i
        k(f"""
        ds_read_b64_tr_b16 v[{r}:{r+1}], v4 offset:{32*i}
        ds_read_b64_tr_b16 v[{r+2}:{r+3}], v4 offset:{32*i+16*1152}
        """)
        if i >= 4:
            j = i - 4; rr = 32 + 4*j
            k(f"s_waitcnt lgkmcnt(8)\nbuffer_store_dwordx4 v[{rr}:{rr+3}], v8, s[36:39], s47 offen {st_flags}\ns_add_u32 s47, s47, {72*1024}")
    k("s_waitcnt lgkmcnt(0)")
    for j in range(32, 36):
        rr = 32 + 4*j
        k(f"buffer_store_dwordx4 v[{rr}:{rr+3}], v8, s[36:39], s47 offen {st_flags}\ns_add_u32 s47, s47, {72*1024}")
    if stamp: stamp_end(k, 36, 3, vt=25)
    k(f"""
    {n}_end:
    s_endpgm
    """)
    return k

if __name__ == "__main__":
    k = ssm(stamp=True, prof=True); write_file("t_k0.s", [k], [k])
    k = ssm(stamp=True, prof=True, dbg=True); write_file("t_k0d.s", [k], [k])
```

```python
import sys
from asmlib import *
from k_ssm import ssm
from k_gemm1 import gemm1
from k_gemm2 import gemm2
from k_gemm3 import gemm3
NAME = "sequential_preLN__ssm_conv_s4__mixer_gmlp__prompt"
ref = open(f"cdna_kernels/{NAME}.s.ref").read().split("\n")
hdr = []
for l in ref:
    if l.startswith("; Override") : break
    hdr.append(l)
hdr = "\n".join(hdr) + "\n; Generated by dev/build.py (hand-written generator scripts). Pipeline: k0 (LN1+S4 kernel gen+conv+weight packing) -> g1 -> g2 -> g3\n"
def build(path, **o):
    ks = [ssm(**o.get("k0", {})), gemm1(**o.get("g1", {})), gemm2(**o.get("g2", {})), gemm3(**o.get("g3", {}))]
    write_file(path, ks, ks, header=hdr)
if __name__ == "__main__":
    build(f"cdna_kernels/{NAME}.s")
```

```python
class Kernel:
    def __init__(self, name, grid, block, lds=0, vgpr=256, sgpr=102, accum=None, agpr=0):
        self.name = name; self.grid = grid; self.block = block; self.lds = lds
        self.vgpr = vgpr; self.sgpr = sgpr; self.accum = accum; self.agpr = agpr
        self.lines = []
        self._lab = 0
    def e(self, s):
        for l in s.strip("\n").split("\n"):
            l = l.strip()
            if l:
                self.lines.append(("" if l.endswith(":") else "    ") + l)
    def __call__(self, s):
        self.e(s)
    def label(self, base="L"):
        self._lab += 1
        return f"{self.name[:-7]}_{base}{self._lab}"
    def text(self):
        n = self.name
        out = [f".globl {n}", ".p2align 8", f".type {n},@function", f"{n}:"]
        out += self.lines
        return "\n".join(out) + "\n"
    def desc(self):
        arch = self.vgpr
        acc = self.accum if self.accum is not None else (arch + 3) // 4 * 4
        nfv = acc + self.agpr if self.agpr else arch
        return f""".p2align 6
.amdhsa_kernel {self.name}
  .amdhsa_next_free_vgpr {nfv}
  .amdhsa_next_free_sgpr {self.sgpr}
  .amdhsa_accum_offset {acc}
  .amdhsa_group_segment_fixed_size 0
  .amdhsa_kernarg_size 136
  .amdhsa_user_sgpr_count 2
  .amdhsa_user_sgpr_kernarg_segment_ptr 1
  .amdhsa_system_sgpr_workgroup_id_x 1
  .amdhsa_float_denorm_mode_32 3
  .amdhsa_float_denorm_mode_16_64 3
.end_amdhsa_kernel
"""

def write_file(path, kernels, launches, header=""):
    out = []
    if header:
        out.append(header.rstrip("\n"))
    for k in launches:
        out.append(f"; @launch kernel={k.name} grid=({k.grid},1,1) block=({k.block},1,1) lds={k.lds}")
    out.append('.amdgcn_target "amdgcn-amd-amdhsa--gfx950"')
    out.append(".text")
    for k in kernels:
        out.append(k.text())
    out.append('.section .rodata,"a"')
    for k in kernels:
        out.append(k.desc())
    open(path, "w").write("\n".join(out))


class Track:
    def __init__(self, k):
        self.k = k; self.l = []; self.v = []
        self.l_done = -1; self.v_done = -1
    def lds(self, ins, tag=None):
        self.k(ins); self.l.append(tag)
    def vm(self, ins, tag=None):
        self.k(ins); self.v.append(tag)
    def _last(self, lst, tag):
        idx = [i for i, t in enumerate(lst) if t == tag]
        assert idx, f"tag {tag} not found"
        return idx[-1]
    def wait_l(self, tag):
        i = self._last(self.l, tag)
        if i <= self.l_done: return
        n = len(self.l) - 1 - i
        n = min(n, 15)
        self.k(f"s_waitcnt lgkmcnt({n})"); self.l_done = len(self.l) - 1 - n
    def wait_v(self, tag):
        i = self._last(self.v, tag)
        if i <= self.v_done: return
        n = len(self.v) - 1 - i
        n = min(n, 63)
        self.k(f"s_waitcnt vmcnt({n})"); self.v_done = len(self.v) - 1 - n
    def wait_all_l(self):
        if self.l_done < len(self.l) - 1:
            self.k("s_waitcnt lgkmcnt(0)"); self.l_done = len(self.l) - 1
    def wait_all_v(self):
        if self.v_done < len(self.v) - 1:
            self.k("s_waitcnt vmcnt(0)"); self.v_done = len(self.v) - 1


class Track2(Track):
    def __init__(self, k):
        super().__init__(k)
        self.vv = [[], []]; self.vd = [-1, -1]
    def vm(self, ins, tag=None, view=None):
        self.k(ins)
        for w in (0, 1):
            if view is None or view == w: self.vv[w].append(tag)
    def wait_v(self, *tags):
        need = []
        for w in (0, 1):
            idx = [i for i, t in enumerate(self.vv[w]) if t in tags]
            if idx and idx[-1] > self.vd[w]:
                need.append(len(self.vv[w]) - 1 - idx[-1])
        if not need: return
        n = min(min(need), 63)
        self.k(f"s_waitcnt vmcnt({n})")
        for w in (0, 1):
            self.vd[w] = max(self.vd[w], len(self.vv[w]) - 1 - n)
    def wait_all_v(self):
        self.k("s_waitcnt vmcnt(0)")
        for w in (0, 1): self.vd[w] = len(self.vv[w]) - 1


import re as _re
def _regs(tok):
    tok = tok.strip().strip("-|")
    m = _re.match(r"^\|?v\[(\d+):(\d+)\]", tok)
    if m: return set(range(int(m.group(1)), int(m.group(2))+1))
    m = _re.match(r"^\|?v(\d+)", tok)
    if m: return {int(m.group(1))}
    return set()
_TRANS = ("v_exp_", "v_log_", "v_rcp_", "v_rsq_", "v_sqrt_", "v_sin_", "v_cos_")
def schedule(lines, dist=3, window=48):
    ops = []
    for l in lines:
        l = l.strip()
        if not l or l.startswith("s_nop"): continue
        name, rest = l.split(None, 1)
        args = [a for a in rest.split(",")]
        args[-1] = args[-1].split()[0] if args[-1].split() else args[-1]
        if name.startswith("ds_write"):
            rd = set().union(*[_regs(a) for a in args]); wr = set(); mem = True
        else:
            wr = _regs(args[0]); rd = set().union(*[_regs(a) for a in args[1:]]) if len(args) > 1 else set(); mem = False
            if name.startswith("v_fmac") or name.startswith("v_dot2c"): rd |= wr
        ops.append(dict(t=l, rd=rd, wr=wr, mem=mem, trans=name.startswith(_TRANS)))
    n = len(ops)
    preds = [set() for _ in range(n)]; raw = [set() for _ in range(n)]
    lastw = {}; readers = {}; lastmem = None
    for i, o in enumerate(ops):
        for r in o["rd"]:
            if r in lastw: preds[i].add(lastw[r]); raw[i].add(lastw[r])
        for r in o["wr"]:
            if r in lastw: preds[i].add(lastw[r])
            for j in readers.get(r, ()): preds[i].add(j)
        for r in o["rd"]: readers.setdefault(r, []).append(i)
        for r in o["wr"]: lastw[r] = i; readers[r] = []
        preds[i].discard(i)
    pos = {}; out = []; done = [False]*n; first = 0
    while len(pos) < n:
        while first < n and done[first]: first += 1
        best = None; bestscore = None
        for i in range(first, min(n, first+window)):
            if done[i] or any(p not in pos for p in preds[i]): continue
            d = min([len(out) - pos[p] for p in raw[i]] + [99])
            if d >= dist: best = i; bestscore = 99; break
            if bestscore is None or d > bestscore: best = i; bestscore = d
        i = best
        if any(ops[p]["trans"] and len(out) - pos[p] < 2 for p in raw[i]): out.append("s_nop 0")
        pos[i] = len(out); out.append(ops[i]["t"]); done[i] = True
    return out
```

```python
import math, struct, sys
from asmlib import *
from layouts import *

NAME = "sequential_preLN__ssm_conv_s4__mixer_gmlp__prompt"
def f2u(x): return struct.unpack("<I", struct.pack("<f", x))[0]
def H(x): return hex(f2u(x))
L2E = math.log2(math.e)
GC0 = -2.0*math.sqrt(2.0/math.pi)*L2E
GC1 = GC0*0.044715
WS = "s[96:99]"; NONCE = "s100"; WAVE = "s101"
ST = "sc1"
LD = "sc1"

def srd(k, s, lo, hi, nbytes):
    k(f"""
    s_mov_b32 s{s}, s{lo}
    s_and_b32 s{s+1}, s{hi}, 0xffff
    s_mov_b32 s{s+2}, {nbytes}
    s_mov_b32 s{s+3}, 0x20000
    """)

def ln_finalize(s1, s2, n, m_out, s_out, r_out):
    t = s_out
    L = [
    f"v_mul_f32 v{s1}, {H(1.0/n)}, v{s1}",
    f"v_mul_f32 v{s2}, {H(1.0/n)}, v{s2}",
    f"v_fma_f32 v{s2}, -v{s1}, v{s1}, v{s2}",
    f"v_max_f32 v{s2}, 0, v{s2}",
    f"v_cvt_pk_bf16_f32 v{m_out}, v{s1}, v{s1}",
    f"v_cvt_pk_bf16_f32 v{t}, v{s2}, v{s2}",
    f"v_and_b32 v{m_out}, 0xffff0000, v{m_out}",
    f"v_and_b32 v{t}, 0xffff0000, v{t}",
    f"v_add_f32 v{t}, {H(1e-5)}, v{t}",
    f"v_cvt_pk_bf16_f32 v{t}, v{t}, v{t}",
    f"v_and_b32 v{t}, 0xffff0000, v{t}",
    f"v_sqrt_f32 v{t}, v{t}",
    "s_nop 0",
    f"v_cvt_pk_bf16_f32 v{t}, v{t}, v{t}",
    f"v_and_b32 v{t}, 0xffff0000, v{t}"]
    if r_out is not None: L += [f"v_rcp_f32 v{r_out}, v{t}", "s_nop 0"]
    return L

class F:
    def __init__(self, stop=None, tl=False, **opt):
        self.k = Kernel(NAME + "_kernel", 256, 512, lds=139264, vgpr=256, sgpr=102)
        self.k.label = self.label
        self._l = 0; self.stop = stop; self.tl_on = tl; self.o = opt
    def label(self, b="L"):
        self._l += 1; return f"L{b}{self._l}"
    def tl(self, idx, va=254):
        if not self.tl_on: return
        self.k(f"""
        s_memrealtime s[92:93]
        s_lshl_b32 s94, s2, 9
        s_lshl_b32 s95, {WAVE}, 6
        s_add_u32 s94, s94, s95
        s_add_u32 s94, s94, {0xF200000 + 4*idx}
        s_waitcnt lgkmcnt(0)
        v_mov_b32 v{va}, s92
        v_mov_b32 v{va+1}, 0
        buffer_store_dword v{va}, v{va+1}, {WS}, s94 offen
        """)
    def signal(self, soff, va, vb):
        self.k(f"""
        v_mov_b32 v{va}, {NONCE}
        v_mov_b32 v{vb}, 0
        s_waitcnt vmcnt(0)
        s_mov_b64 exec, 1
        buffer_store_dword v{va}, v{vb}, {WS}, {soff} offen {ST}
        s_mov_b64 exec, -1
        """)
    def poll(self, loads, regs, cnt="s90", tmp="s[88:89]"):
        k = self.k; lab = self.label("pl"); ok = self.label("ok")
        k(f"s_mov_b32 {cnt}, 0\n{lab}:")
        for x in loads: k(x)
        k("s_waitcnt vmcnt(0)")
        k(f"v_cmp_ne_u32 vcc, {NONCE}, v{regs[0]}")
        for r in regs[1:]:
            k(f"v_cmp_ne_u32 {tmp}, {NONCE}, v{r}\ns_or_b64 vcc, vcc, {tmp}")
        k(f"""
        s_add_u32 {cnt}, {cnt}, 1
        s_cmp_eq_u64 vcc, 0
        s_cbranch_scc1 {ok}
        s_sleep 1
        s_cmp_lt_u32 {cnt}, 0x20000
        s_cbranch_scc1 {lab}
        {ok}:
        """)
    def goto(self, phase):
        if self.stop is not None and phase > self.stop: self.k("s_endpgm")
        else: self.k(f"s_branch P{phase}")

    def p0(self):
        k = self.k
        REG = 18432; UB = 4*REG; KE = 4608; KO = KE + 4160
        k(f"""
        s_cmp_ge_u32 s2, 256
        s_cbranch_scc1 Lend
        s_load_dwordx2 s[30:31], s[0:1], 128
        s_load_dwordx16 s[4:19], s[0:1], 0
        s_load_dwordx2 s[20:21], s[0:1], 64
        s_load_dwordx2 s[22:23], s[0:1], 80
        s_load_dwordx2 s[24:25], s[0:1], 88
        s_load_dwordx2 s[26:27], s[0:1], 104
        v_lshrrev_b32 v2, 6, v0
        v_and_b32 v1, 63, v0
        s_mov_b32 s3, {WS_EP}
        v_readfirstlane_b32 {WAVE}, v2
        v_and_b32 v20, 15, v1                  ; idx
        v_lshrrev_b32 v21, 4, v1               ; kq
        s_waitcnt lgkmcnt(0)
        s_load_dword {NONCE}, s[30:31], s3
        s_mov_b32 s3, {WAVE}
        """)
        srd(k, 32, 4, 5, 2048*1152)
        srd(k, 96, 30, 31, 0x10000000)
        self.tl(0)
        k(f"""
        s_cmp_ge_u32 s2, 144
        s_cbranch_scc1 Lpack
        s_cmp_ge_u32 s3, 4
        s_cbranch_scc1 Lhelp
        """)
        k(f"""
        s_lshl_b32 s40, s2, 2
        s_add_u32 s40, s40, s3                 ; d
        s_lshl_b32 s41, s40, 8
        v_lshlrev_b32 v2, 1, v1
        v_add_u32 v2, s41, v2
        s_lshl_b32 s41, s40, 1
        v_mov_b32 v3, s41
        global_load_ushort v4, v3, s[18:19]    ; log_dt
        """)
        for a in range(6):
            for p in range(2):
                k(f"global_load_ushort v{8+2*a+p}, v2, s[{6+2*a}:{7+2*a}] offset:{128*p}")
        k(f"""
        s_mul_i32 s43, s3, {REG}
        s_movk_i32 s42, 272
        v_mul_lo_u32 v7, v1, s42
        v_add_u32 v7, s43, v7
        v_lshrrev_b32 v22, 2, v1
        v_mul_lo_u32 v22, v22, s42
        v_and_b32 v23, 3, v1
        v_lshl_add_u32 v22, v23, 3, v22
        v_add_u32 v22, s43, v22
        s_mul_i32 s46, s3, 4608
        s_add_u32 s46, s46, {UB}
        v_mov_b32 v24, 0
        v_mov_b32 v25, 0
        v_lshlrev_b32 v23, 3, v1
        v_add_u32 v23, s46, v23
        ds_write_b64 v23, v[24:25]
        """)
        SA = 200; GA = 212
        k(f"""
        v_and_b32 v43, 7, v20
        v_lshrrev_b32 v44, 3, v20
        v_lshl_add_u32 v40, v44, 7, v43
        v_and_b32 v43, 3, v20
        v_lshlrev_b32 v43, 1, v43
        v_lshrrev_b32 v44, 2, v20
        v_lshl_add_u32 v41, v44, 7, v43
        v_add_u32 v41, 256, v41
        v_and_b32 v43, 1, v20
        v_lshlrev_b32 v43, 2, v43
        v_lshrrev_b32 v44, 1, v20
        v_lshl_add_u32 v45, v44, 7, v43
        v_cmp_gt_u32 vcc, 8, v20
        v_lshlrev_b32 v42, 7, v20
        v_add_u32 v42, 1024, v42
        v_cndmask_b32 v41, v45, v41, vcc
        v_lshlrev_b32 v43, 5, v21
        v_add_u32 v40, v40, v43
        v_add_u32 v41, v41, v43
        v_add_u32 v42, v42, v43
        v_cvt_f32_u32 v40, v40
        v_cvt_f32_u32 v41, v41
        v_cvt_f32_u32 v42, v42
        s_sub_u32 s47, s43, {2*0x3F00}
        v_mov_b32 v46, s47
        v_mov_b32 v47, {H(4096.0)}
        """)
        for t in range(3):
            for r in range(4):
                lf = SA + 4*t + r
                k(f"v_add_f32 v{lf}, {H(8.0*r)}, v{40+t}")
                if t == 0 and r == 0: k(f"v_max_f32 v{lf}, 0.5, v{lf}")
                if t == 2:
                    k(f"v_cmp_lt_f32 vcc, {H(2048.0)}, v{lf}\ns_nop 1\nv_cndmask_b32 v{lf}, v{lf}, v47, vcc")
                k(f"v_mad_u32_u16 v{lf}, v{lf}, 2, v46 op_sel:[1,0,0,0]")
        k("v_lshlrev_b32 v40, 3, v1\nv_sub_u32 v40, 2047, v40\nv_cvt_f32_i32 v40, v40")
        for i in range(4):
            AD = GA + 9*i
            for e in range(0, 10, 2):
                k(f"v_add_f32 v56, {H(-512.0*i - e)}, v40")
                k(f"v_add_f32 v57, {H(-512.0*i - e - 1)}, v40")
                if i == 3 and e in (6, 8):
                    for r in (56, 57):
                        k(f"v_fma_f32 v58, v{r}, -0.5, 1.0\nv_mul_f32 v58, 0.5, v58\nv_max_f32 v{r}, v{r}, v58")
                k(f"v_cvt_pk_bf16_f32 v56, v56, v57")
                k(f"v_mad_u32_u16 v{AD+e}, v56, 2, v46")
                if e < 8: k(f"v_mad_u32_u16 v{AD+e+1}, v56, 2, v46 op_sel:[1,0,0,0]")
        k(f"""
        s_waitcnt vmcnt(0) lgkmcnt(0)
        s_add_u32 {NONCE}, {NONCE}, 1
        v_lshlrev_b32 v4, 16, v4
        v_mul_f32 v4, {H(L2E)}, v4
        v_exp_f32 v4, v4
        """)
        for r in range(8, 20): k(f"v_lshlrev_b32 v{r}, 16, v{r}")
        k("v_cvt_pk_bf16_f32 v4, v4, v4\nv_and_b32 v4, 0xffff0000, v4")
        for p in range(2):
            Ar, Ai, Br, Bi, Cr, Ci = [8+2*a+p for a in range(6)]
            k(f"""
            v_mul_f32 v{26+p}, v4, v{Ar}
            v_mul_f32 v{28+p}, v4, v{Ai}
            v_mul_f32 v{Br}, v4, v{Br}
            v_mul_f32 v{Bi}, v4, v{Bi}
            v_mul_f32 v{26+p}, {H(L2E)}, v{26+p}
            v_mul_f32 v{28+p}, {H(1/(2*math.pi))}, v{28+p}
            v_mul_f32 v{30+p}, v{Cr}, v{Br}
            v_mul_f32 v{32+p}, v{Cr}, v{Bi}
            v_fma_f32 v{30+p}, -v{Ci}, v{Bi}, v{30+p}
            v_fma_f32 v{32+p}, v{Ci}, v{Br}, v{32+p}
            """)
        k("v_max3_f32 v34, |v30|, |v31|, |v32|\nv_max_f32 v34, v34, |v33|\ns_nop 1")
        for mode in ("quad_perm:[1,0,3,2]", "quad_perm:[2,3,0,1]", "row_half_mirror", "row_mirror"):
            k(f"v_max_f32_dpp v34, v34, v34 {mode} row_mask:0xf bank_mask:0xf\ns_nop 1")
        k(f"""
        v_mov_b32 v35, v34
        s_nop 1
        v_permlane16_swap_b32 v34, v35
        s_nop 1
        v_max_f32 v34, v34, v35
        v_mov_b32 v35, v34
        s_nop 1
        v_permlane32_swap_b32 v34, v35
        s_nop 1
        v_max_f32 v34, v34, v35
        v_frexp_exp_i32_f32 v34, v34
        v_sub_u32 v35, 0, v34
        v_ldexp_f32 v30, v30, v35
        v_ldexp_f32 v31, v31, v35
        v_ldexp_f32 v32, v32, v35
        v_ldexp_f32 v33, v33, v35
        v_mov_b32 v60, 1.0
        v_mov_b32 v61, 0
        """)
        EB = 64
        def E_(e): return EB + 2*e
        W1, W8, W32 = 40, 42, 44
        KACC = 48; PKB = 180; FR = 64
        def kgen_valu(p):
            L = []
            def cmul(d, a, b):
                L.append(f"v_pk_mul_f32 v[{d}:{d+1}], v[{a}:{a+1}], v[{b}:{b+1}] op_sel:[0,0] op_sel_hi:[0,1]")
                L.append(f"v_pk_fma_f32 v[{d}:{d+1}], v[{a}:{a+1}], v[{b}:{b+1}], v[{d}:{d+1}] op_sel:[1,1,0] op_sel_hi:[1,0,1] neg_lo:[1,0,0]")
            tt = [0]
            def cexp(d, l):
                t = 196 + 2*(tt[0] % 2); tt[0] += 1
                L.extend([f"v_mul_f32 v{t}, {H(float(l))}, v{26+p}", f"v_mul_f32 v{t+1}, {H(float(l))}, v{28+p}",
                          f"v_exp_f32 v{t}, v{t}", f"v_fract_f32 v{t+1}, v{t+1}",
                          f"v_cos_f32 v{d}, v{t+1}", f"v_sin_f32 v{d+1}, v{t+1}",
                          f"v_mul_f32 v{d}, v{d}, v{t}", f"v_mul_f32 v{d+1}, v{d+1}, v{t}"])
            cexp(W8, 8); cexp(W32, 32); cexp(W1, 1); cexp(46, 128)
            pre = L[:]; L.clear()
            P = {c: E_(16+c) for c in range(1, 8)}
            Q = {1: E_(24), 2: E_(32), 3: E_(36), 4: E_(40), 5: E_(42), 6: E_(44), 7: E_(46), 8: E_(48)}
            L.extend([f"v_mov_b32 v{E_(0)}, v{30+p}", f"v_mov_b32 v{E_(0)+1}, v{32+p}",
                      f"v_mov_b32 v{P[1]}, v{W1}", f"v_mov_b32 v{P[1]+1}, v{W1+1}",
                      f"v_mov_b32 v{Q[1]}, v46", f"v_mov_b32 v{Q[1]+1}, v47"])
            cmul(E_(4), E_(0), W32); cmul(P[2], W1, W1); cmul(Q[2], 46, 46); cmul(E_(1), E_(0), W8)
            cmul(E_(8), E_(4), W32); cmul(P[3], P[2], W1); cmul(P[4], P[2], P[2]); cmul(Q[3], Q[2], 46); cmul(Q[4], Q[2], Q[2]); cmul(E_(2), E_(1), W8); cmul(E_(5), E_(4), W8)
            cmul(E_(12), E_(8), W32); cmul(E_(3), E_(2), W8); cmul(E_(6), E_(5), W8); cmul(E_(9), E_(8), W8)
            cmul(P[5], P[4], W1); cmul(P[6], P[4], P[2]); cmul(P[7], P[4], P[3])
            cmul(E_(7), E_(6), W8); cmul(E_(10), E_(9), W8); cmul(E_(13), E_(12), W8)
            def pack(grp):
                base = PKB + (grp % 2)*8
                neg = "-" if grp < 2 else ""
                for i in range(4):
                    e0, e1 = 8*grp + 2*i, 8*grp + 2*i + 1
                    r0 = 60 if e0 == 16 else E_(min(e0, 56)); r1 = E_(min(e1, 56))
                    L.append(f"v_cvt_pk_f16_f32 v{base+i}, v{r0}, v{r1}")
                    L.append(f"v_cvt_pk_f16_f32 v{base+4+i}, {neg}v{r0+1}, {neg}v{r1+1}")
                    if grp == 7: break
                if grp == 7:
                    L.append(f"ds_write_b32 v7, v{base} offset:{16*grp}")
                    L.append(f"ds_write_b32 v7, v{base+4} offset:{128+16*grp}")
                else:
                    L.append(f"ds_write_b128 v7, v[{base}:{base+3}] offset:{16*grp}")
                    L.append(f"ds_write_b128 v7, v[{base+4}:{base+7}] offset:{128+16*grp}")
            cmul(Q[5], Q[4], 46); cmul(Q[6], Q[4], Q[2]); cmul(Q[7], Q[4], Q[3]); cmul(Q[8], Q[4], Q[4])
            pack(0)
            cmul(E_(11), E_(10), W8); cmul(E_(14), E_(13), W8)
            pack(2)
            for c in range(1, 8): cmul(E_(24+c), P[c], 46)
            cmul(E_(15), E_(14), W8)
            pack(3)
            for a in range(2):
                for c in range(1, 4): cmul(E_(32+4*a+c), P[2*c], Q[2+a])
            pack(1); pack(4)
            for a in range(4): cmul(E_(41+2*a), P[4], Q[4+a])
            pack(5)
            for a in range(1, 9): cmul(E_(48+a), Q[8], Q[a])
            pack(6); pack(7)
            return schedule(pre, dist=3), schedule(L, dist=3)
        def kgen_reads():
            for kb in range(4):
                for t in range(4):
                    r = FR + (kb*4+t)*4
                    k(f"ds_read_b64_tr_b16 v[{r}:{r+1}], v22 offset:{kb*16*272 + t*32}")
                    k(f"ds_read_b64_tr_b16 v[{r+2}:{r+3}], v22 offset:{kb*16*272 + t*32 + 128}")
        def kgen_mfma(p):
            k("s_waitcnt lgkmcnt(0)")
            for kb in range(4):
                for t in range(3):
                    a = KACC + 4*t; A_ = FR + kb*16; B_ = FR + (kb*4+1+t)*4
                    c = f"v[{a}:{a+3}]" if (p or kb) else "0"
                    k(f"v_mfma_f32_16x16x32_f16 v[{a}:{a+3}], v[{A_}:{A_+3}], v[{B_}:{B_+3}], {c}")
        pre0, main0 = kgen_valu(0); pre1, main1 = kgen_valu(1)
        for x in pre0 + main0: k(x)
        kgen_reads()
        for x in pre1: k(x)
        kgen_mfma(0)
        for x in main1: k(x)
        kgen_reads()
        kgen_mfma(1)
        k(f"""
        v_mov_b32 v180, 0
        v_mov_b32 v181, 0
        v_mov_b32 v182, 0
        v_mov_b32 v183, 0
        s_add_u32 s48, s43, {2*0x40}
        v_mov_b32 v184, s48
        ds_write_b16 v184, v180
        v_lshlrev_b32 v41, 4, v1
        v_add_u32 v41, s43, v41
        v_min_u32 v42, 3, v1
        v_lshlrev_b32 v42, 4, v42
        v_add_u32 v42, s43, v42
        ds_write_b128 v42, v[180:183] offset:{KE+4096}
        ds_write_b128 v42, v[180:183] offset:{KO+4096}
        """)
        for t in range(3):
            for r in range(4): k(f"v_ldexp_f32 v{KACC+4*t+r}, v{KACC+4*t+r}, v34")
            for r in range(0, 4, 2):
                a = KACC + 4*t + r
                k(f"v_cvt_pk_bf16_f32 v{a}, v{a}, v{a+1}")
                k(f"ds_write_b16 v{SA+4*t+r}, v{a}")
                k(f"ds_write_b16_d16_hi v{SA+4*t+r+1}, v{a}")
        for i in range(4):
            for e in range(9): k(f"ds_read_u16 v{100+i*10+e}, v{GA+9*i+e}")
        k(f"""
        v_lshlrev_b32 v40, 3, v21
        v_sub_u32 v40, v40, v20
        v_add_u32 v40, {2031 - 224}, v40
        v_and_b32 v44, 1, v20
        v_cmp_eq_u32 vcc, 1, v44
        v_mov_b32 v42, {KO - 2}
        v_mov_b32 v43, {KE}
        v_cndmask_b32 v42, v42, v43, vcc
        v_lshl_add_u32 v40, v40, 1, v42
        v_add_u32 v8, s43, v40
        """)
        for Pp in range(1, 8): k(f"v_subrev_u32 v{8+Pp}, {512*Pp}, v8")
        k(f"""
        v_lshlrev_b32 v16, 5, v20
        v_lshl_add_u32 v16, v21, 4, v16
        s_add_u32 s48, s46, 32
        v_add_u32 v16, s48, v16                      ; vB
        s_lshl_b32 s48, s3, 6
        s_add_u32 s48, s48, s43
        v_lshlrev_b32 v17, 5, v20
        v_lshl_add_u32 v17, v21, 3, v17
        v_add_u32 v17, s48, v17
        """)
        for i in range(4):
            E = 100 + i*10; O = 144 + i*8
            k(f"s_waitcnt lgkmcnt({min(15, 9*(3-i) + 2*i)})")
            for d in range(4): k(f"v_lshl_or_b32 v{O+d}, v{E+2*d+1}, 16, v{E+2*d}")
            for d in range(4): k(f"v_lshl_or_b32 v{O+4+d}, v{E+2*d+2}, 16, v{E+2*d+1}")
            k(f"ds_write_b128 v41, v[{O}:{O+3}] offset:{KE + i*1024}")
            k(f"ds_write_b128 v41, v[{O+4}:{O+7}] offset:{KO + i*1024}")
        self.tl(1)
        ACC = 24; AT = 56; BT = 184
        def ard(slot, Pp, p0):
            a = AT + slot*4; o = (7-p0)*16
            return [f"ds_read2_b32 v[{a}:{a+1}], v{8+Pp} offset0:{o} offset1:{o+1}", f"ds_read2_b32 v[{a+2}:{a+3}], v{8+Pp} offset0:{o+2} offset1:{o+3}"]
        def brd(slot, c, p0):
            b = BT + slot*4
            return [f"ds_read_b128 v[{b}:{b+3}], v16 offset:{512*c + 64*(7-p0)}"]
        def mm(cb, aslot, bslot, first):
            a = AT + aslot*4; b = BT + bslot*4; c = ACC + cb*4
            k(f"v_mfma_f32_16x16x32_bf16 v[{c}:{c+3}], v[{a}:{a+3}], v[{b}:{b+3}], {'0' if first else f'v[{c}:{c+3}]'}")
        for Pp in range(8):
            for x in ard(Pp, Pp, 0): k(x)
        k("s_waitcnt lgkmcnt(0)\ns_barrier")
        self.tl(2)
        for c in range(4): k(brd(c, c, 0)[0])
        for p0 in range(8):
            s = p0 % 2; nx = []
            if p0 < 7:
                for c in range(4): nx += brd((1-s)*4 + c, c, p0+1)
                for Pp in range(8): nx += ard((1-s)*8 + Pp, Pp, p0+1)
            else:
                for q in range(3):
                    for Pp in range(4): nx += ard(16 + q*4 + Pp, Pp, q)
            k("s_waitcnt lgkmcnt(0)")
            for c in range(4):
                for Pp in range(8-c):
                    mm(c+Pp, s*8 + Pp, s*4 + c, p0 == 0 and c == 0)
                    if nx: k(nx.pop(0))
        aslotB = {}
        for q in range(3):
            for Pp in range(4): aslotB[(q, Pp)] = 16 + q*4 + Pp
        rest = []
        free = [28, 29, 30, 31] + list(range(16))
        for q in range(3, 8):
            for Pp in range(4):
                sl = free.pop(0); aslotB[(q, Pp)] = sl; rest += ard(sl, Pp, q)
        for x in rest[:8]: k(x)
        k("s_nop 3")
        for cb in range(4):
            c = ACC + cb*4
            k(f"v_cvt_pk_bf16_f32 v{c}, v{c}, v{c+1}\nv_cvt_pk_bf16_f32 v{c+1}, v{c+2}, v{c+3}\nds_write_b64 v17, v[{c}:{c+1}] offset:{512*cb}")
        for x in rest[8:]: k(x)
        k("s_waitcnt lgkmcnt(0)\ns_barrier")
        self.tl(3)
        for half in range(2):
            for q in range(4*half, 4*half+4):
                for c in range(4): k(brd((q % 4)*4 + c, 4+c, q)[0])
            for q in range(4*half, 4*half+4):
                k(f"s_waitcnt lgkmcnt({4*(3 - q % 4)})")
                for c in range(4):
                    for Pp in range(4-c):
                        mm(4+c+Pp, aslotB[(q, Pp)], (q % 4)*4 + c, False)
        k("s_nop 7")
        for cb in range(4, 8):
            c = ACC + cb*4
            k(f"v_cvt_pk_bf16_f32 v{c}, v{c}, v{c+1}\nv_cvt_pk_bf16_f32 v{c+1}, v{c+2}, v{c+3}\nds_write_b64 v17, v[{c}:{c+1}] offset:{512*cb}")
        k("s_waitcnt lgkmcnt(0)\ns_barrier")
        self.tl(4)
        k("s_barrier")
        self.goto(1)
        XR = 32; SR = 48; XF = 64; UF = 96; YR = 128
        k(f"""
        Lhelp:
        s_sub_u32 s40, s3, 4                   ; hw
        s_lshl_b32 s41, s2, 3
        s_load_dwordx2 s[44:45], s[20:21], s41 ; Dskip x4
        s_lshl_b32 s42, s40, 6
        v_add_u32 v5, s42, v1                  ; t0 = 64hw + L
        s_movk_i32 s42, 1152
        v_mul_lo_u32 v6, v5, s42
        v_lshlrev_b32 v8, 3, v5
        s_mov_b32 s49, {WS_ST1}
        s_mov_b32 s54, {WS_ST1 + 4096}
        s_mov_b32 s55, {WS_ST1 + 8192}
        s_mov_b32 s56, {WS_ST1 + 12288}
        """)
        def gather(i):
            k(f"buffer_load_dwordx2 v[{XR+2*i}:{XR+2*i+1}], v6, s[32:35], s41 offen")
            k(f"s_add_u32 s41, s41, {256*1152}")
        stl = [f"buffer_load_dwordx2 v[{SR+2*i}:{SR+2*i+1}], v8, {WS}, s{(49,54,55,56)[i//2]} offen offset:{2048*(i%2)} {LD}" for i in range(8)]
        NG1 = self.o.get("ng1", 4)
        for i in range(NG1): gather(i)
        for x in stl: k(x)
        for i in range(NG1, 8): gather(i)
        def unp(dst, src):
            k(f"v_lshlrev_b32 v{dst}, 16, v{src}\nv_and_b32 v{dst+1}, 0xffff0000, v{src}\nv_lshlrev_b32 v{dst+2}, 16, v{src+1}\nv_and_b32 v{dst+3}, 0xffff0000, v{src+1}")
        k(f"""
        v_lshlrev_b32 v11, 1, v5
        v_add_u32 v11, {UB + 512}, v11
        s_waitcnt lgkmcnt(0)
        s_add_u32 {NONCE}, {NONCE}, 1
        s_lshl_b32 s50, s44, 16
        s_and_b32 s51, s44, 0xffff0000
        s_lshl_b32 s52, s45, 16
        s_and_b32 s53, s45, 0xffff0000
        v_bfe_u32 v9, v1, 2, 2
        s_movk_i32 s48, {REG+64}
        v_mul_lo_u32 v9, v9, s48
        v_lshrrev_b32 v10, 4, v1
        v_lshl_add_u32 v9, v10, 5, v9
        v_and_b32 v10, 3, v1
        v_lshl_add_u32 v9, v10, 3, v9
        s_lshl_b32 s48, s40, 7
        v_add_u32 v9, s48, v9
        v_lshrrev_b32 v10, 5, v1
        s_mov_b32 s48, 36864
        v_mul_lo_u32 v10, v10, s48
        v_and_b32 v7, 31, v1
        v_lshl_add_u32 v10, v7, 4, v10
        s_mul_i32 s48, s40, {2*36864}
        s_lshr_b32 s47, s2, 1
        s_lshl_b32 s47, s47, 9
        s_add_u32 s48, s48, s47
        s_and_b32 s47, s2, 1
        s_lshl_b32 s47, s47, 3
        s_add_u32 s48, s48, s47
        s_add_u32 s48, s48, {WS_HF}
        s_mov_b32 s90, 0
        s_waitcnt vmcnt({8-NG1})
        Lstchk:
        """)
        k(f"v_xor_b32 v12, v{SR}, v{SR+1}\nv_xor_b32 v12, {NONCE}, v12")
        for i in range(1, 8):
            k(f"v_xor_b32 v13, v{SR+2*i}, v{SR+2*i+1}\nv_xor_b32 v13, {NONCE}, v13\nv_or_b32 v12, v12, v13")
        k(f"""
        v_cmp_ne_u32 vcc, 0, v12
        s_add_u32 s90, s90, 1
        s_cmp_eq_u64 vcc, 0
        s_cbranch_scc1 Lstok
        s_cmp_ge_u32 s90, 0x20000
        s_cbranch_scc1 Lstok
        """)
        for x in stl: k(x)
        k("s_waitcnt vmcnt(0)\ns_branch Lstchk\nLstok:")
        self.tl(1)
        ntl = 1 if self.tl_on else 0
        for i in range(8):
            k(f"v_lshlrev_b32 v{SR+2*i+1}, 16, v{SR+2*i}\nv_and_b32 v{SR+2*i}, 0xffff0000, v{SR+2*i}\nv_rcp_f32 v{SR+2*i+1}, v{SR+2*i+1}")
        def build(i, nout):
            m = SR + 2*i; r = m + 1; X = XF + 4*i
            T = 12 + (i % 2)*8; U = XR + 2*i
            if nout is not None: k(f"s_waitcnt vmcnt({nout})")
            unp(X, U)
            for c in range(4): k(f"v_sub_f32 v{T+c}, v{X+c}, v{m}")
            k(f"v_cvt_pk_bf16_f32 v{T+4}, v{T}, v{T+1}\nv_cvt_pk_bf16_f32 v{T+5}, v{T+2}, v{T+3}")
            unp(T, T+4)
            for c in range(4): k(f"v_mul_f32 v{T+c}, v{T+c}, v{r}")
            k(f"""
            v_cvt_pk_bf16_f32 v{U}, v{T}, v{T+1}
            v_cvt_pk_bf16_f32 v{U+1}, v{T+2}, v{T+3}
            ds_write_b16 v11, v{U} offset:{512*i}
            ds_write_b16_d16_hi v11, v{U} offset:{512*i + 4608}
            ds_write_b16 v11, v{U+1} offset:{512*i + 2*4608}
            ds_write_b16_d16_hi v11, v{U+1} offset:{512*i + 3*4608}
            """)
        def udcalc(i):
            U = XR + 2*i; T = UF + 4*i
            unp(T, U)
            for c in range(4): k(f"v_mul_f32 v{T+c}, s{50+c}, v{T+c}")
            k(f"v_cvt_pk_bf16_f32 v{U}, v{T}, v{T+1}\nv_cvt_pk_bf16_f32 v{U+1}, v{T+2}, v{T+3}")
            unp(T, U)
        def final(i):
            y = YR + 2*i; T = 12 + (i % 2)*8
            unp(T, y)
            for c in range(4): k(f"v_add_f32 v{T+c}, v{T+c}, v{UF+4*i+c}")
            k(f"v_cvt_pk_bf16_f32 v{T+4}, v{T}, v{T+1}\nv_cvt_pk_bf16_f32 v{T+5}, v{T+2}, v{T+3}")
            unp(T, T+4)
            for c in range(4): k(f"v_add_f32 v{T+c}, v{T+c}, v{XF+4*i+c}")
            k(f"v_cvt_pk_bf16_f32 v{y}, v{T}, v{T+1}\nv_cvt_pk_bf16_f32 v{y+1}, v{T+2}, v{T+3}")
            k(f"buffer_store_dwordx2 v[{y}:{y+1}], v10, {WS}, s48 offen {ST}")
            k(f"s_add_u32 s48, s48, {8*36864}")
        for i in range(4): build(i, (7 - i + ntl) if i >= NG1 else None)
        k("s_waitcnt lgkmcnt(0)\ns_barrier")
        for i in range(4): udcalc(i)
        for i in range(4, 8): build(i, 7 - i + ntl)
        k("s_waitcnt lgkmcnt(0)\ns_barrier")
        self.tl(3)
        for i in range(4): k(f"ds_read_b64_tr_b16 v[{YR+2*i}:{YR+2*i+1}], v9 offset:{512*i}")
        for i in range(4, 8): udcalc(i)
        k("s_waitcnt lgkmcnt(0)")
        for i in range(4): final(i)
        k("s_barrier")
        for i in range(4, 8): k(f"ds_read_b64_tr_b16 v[{YR+2*i}:{YR+2*i+1}], v9 offset:{512*i}")
        k(f"""
        s_lshl_b32 s41, s40, 10
        s_lshl_b32 s42, s2, 2
        s_add_u32 s41, s41, s42
        s_add_u32 s41, s41, {F1C}
        s_waitcnt lgkmcnt(0)
        s_barrier
        """)
        for i in range(4, 8): final(i)
        self.signal("s41", 12, 13)
        self.tl(4)
        self.goto(1)
        k(f"""
        Lpack:
        s_sub_u32 s40, s2, 144                       ; a
        s_lshr_b32 s54, s3, 2
        s_and_b32 s55, s3, 3
        v_lshlrev_b32 v8, 4, v1
        s_mul_i32 s41, s3, 112
        s_add_u32 s41, s41, s40
        s_cmp_ge_u32 s41, 256
        s_cbranch_scc1 Lnoln
        v_lshrrev_b32 v2, 3, v1
        s_lshl_b32 s42, s41, 3
        v_add_u32 v2, s42, v2                        ; row
        s_movk_i32 s42, 1152
        v_mul_lo_u32 v3, v2, s42
        v_and_b32 v4, 7, v1
        v_lshl_add_u32 v3, v4, 4, v3
        """)
        for i in range(9): k(f"buffer_load_dwordx4 v[{32+4*i}:{35+4*i}], v3, s[32:35], 0 offen offset:{128*i}")
        k("v_mov_b32 v28, 0x3f803f80")
        for r in range(8): k(f"v_mov_b32 v{12+r}, 0")
        for i in range(9):
            k(f"s_waitcnt vmcnt({8-i})")
            for d in range(4):
                r = 32 + 4*i + d
                k(f"v_dot2c_f32_bf16 v{12+d}, v{r}, v28\nv_dot2c_f32_bf16 v{16+d}, v{r}, v{r}")
        k("""
        s_nop 2
        v_add_f32 v12, v12, v13
        v_add_f32 v14, v14, v15
        v_add_f32 v16, v16, v17
        v_add_f32 v18, v18, v19
        v_add_f32 v24, v12, v14
        v_add_f32 v25, v16, v18
        s_nop 1
        """)
        for mode in ("quad_perm:[1,0,3,2]", "quad_perm:[2,3,0,1]", "row_half_mirror"):
            k(f"v_add_f32_dpp v24, v24, v24 {mode} row_mask:0xf bank_mask:0xf\nv_add_f32_dpp v25, v25, v25 {mode} row_mask:0xf bank_mask:0xf\ns_nop 1")
        for x in ln_finalize(24, 25, 576, 26, 29, None): k(x)
        k(f"""
        s_waitcnt lgkmcnt(0)
        s_add_u32 s42, {NONCE}, 1
        v_lshrrev_b32 v29, 16, v29
        v_or_b32 v26, v26, v29
        v_xor_b32 v27, s42, v26
        v_lshlrev_b32 v2, 3, v2
        s_mov_b32 s42, {WS_ST1}
        v_cmp_eq_u32 vcc, 0, v4
        s_mov_b64 exec, vcc
        buffer_store_dwordx2 v[26:27], v2, {WS}, s42 offen {ST}
        s_mov_b64 exec, -1
        Lnoln:
        s_waitcnt lgkmcnt(0)
        s_add_u32 {NONCE}, {NONCE}, 1
        s_sub_u32 s42, s40, 72
        s_cmp_ge_u32 s40, 108
        s_cbranch_scc1 Lwarm
        s_cmp_ge_u32 s40, 72
        s_cbranch_scc1 Lw3
        """)
        srd(k, 48, 22, 23, 576*9216)
        k(f"""
        s_lshl_b32 s42, s40, 1
        s_add_u32 s42, s42, s54                      ; ft
        v_lshrrev_b32 v2, 2, v1
        s_movk_i32 s43, 9216
        v_mul_lo_u32 v2, v2, s43
        v_and_b32 v3, 3, v1
        v_lshl_add_u32 v2, v3, 4, v2
        s_lshl_b32 s43, s42, 6
        s_mul_i32 s46, s55, {9*16*9216}
        s_add_u32 s43, s43, s46
        s_mul_i32 s46, s3, 9216
        """)
        for i in range(9):
            k(f"s_add_u32 m0, s46, {1024*i}\ns_nop 0\nbuffer_load_dwordx4 v2, s[48:51], s43 offen lds\ns_add_u32 s43, s43, {16*9216}")
        k(f"""
        v_lshrrev_b32 v4, 5, v1
        v_lshlrev_b32 v4, 9, v4
        v_bfe_u32 v5, v1, 2, 2
        v_lshl_add_u32 v4, v5, 6, v4
        v_bfe_u32 v5, v1, 4, 1
        v_lshl_add_u32 v4, v5, 5, v4
        v_lshl_add_u32 v4, v3, 3, v4
        v_add_u32 v4, s46, v4
        s_mul_i32 s47, s42, {37*1024}
        s_add_u32 s47, s47, {WS_W1}
        s_add_u32 s56, s47, {36*1024}
        s_mul_i32 s46, s55, 9216
        s_add_u32 s47, s47, s46
        v_mov_b32 v28, 0x3f803f80
        v_mov_b32 v16, 0
        v_mov_b32 v17, 0
        v_mov_b32 v18, 0
        v_mov_b32 v19, 0
        """)
        for i in range(9):
            r = 32 + 4*i
            k(f"""
            s_waitcnt vmcnt(8)
            ds_read_b64_tr_b16 v[{r}:{r+1}], v4 offset:{1024*i}
            ds_read_b64_tr_b16 v[{r+2}:{r+3}], v4 offset:{1024*i+256}
            s_waitcnt lgkmcnt(0)
            buffer_store_dwordx4 v[{r}:{r+3}], v8, {WS}, s47 offen {ST}
            s_add_u32 s47, s47, 1024
            """)
            for d in range(4): k(f"v_dot2c_f32_bf16 v{16+d}, v{r+d}, v28")
        k(f"""
        s_nop 2
        v_add_f32 v16, v16, v17
        v_add_f32 v18, v18, v19
        v_add_f32 v16, v16, v18
        s_lshl_b32 s46, s3, 8
        s_add_u32 s46, s46, {8*9216}
        v_lshlrev_b32 v5, 2, v1
        v_add_u32 v5, s46, v5
        ds_write_b32 v5, v16
        s_lshl_b32 s41, s42, 4
        s_lshl_b32 s43, s55, 2
        s_add_u32 s41, s41, s43
        s_add_u32 s41, s41, {F1W}
        s_waitcnt lgkmcnt(0)
        s_barrier
        s_cmp_eq_u32 s55, 0
        s_cbranch_scc0 Lpsig
        ds_read_b32 v17, v5 offset:256
        ds_read_b32 v18, v5 offset:512
        ds_read_b32 v19, v5 offset:768
        s_waitcnt lgkmcnt(0)
        v_add_f32 v16, v16, v17
        v_add_f32 v18, v18, v19
        v_add_f32 v16, v16, v18
        v_mov_b32 v17, v16
        s_nop 1
        v_permlane32_swap_b32 v16, v17
        s_nop 1
        v_add_f32 v16, v16, v17
        v_sub_f32 v16, 0, v16
        v_cvt_pk_bf16_f32 v17, v16, v16
        v_and_b32 v17, 0xffff0000, v17
        v_sub_f32 v16, v16, v17
        v_cvt_pk_bf16_f32 v18, v16, v16
        v_and_b32 v18, 0xffff0000, v18
        v_sub_f32 v16, v16, v18
        v_cvt_pk_bf16_f32 v19, v16, v16
        v_lshrrev_b32 v17, 16, v17
        v_or_b32 v24, v17, v18
        v_and_b32 v25, 0xffff, v19
        v_cmp_gt_u32 vcc, 32, v1
        v_mov_b32 v26, 0
        v_mov_b32 v27, 0
        v_cndmask_b32 v24, 0, v24, vcc
        v_cndmask_b32 v25, 0, v25, vcc
        buffer_store_dwordx4 v[24:27], v8, {WS}, s56 offen {ST}
        s_branch Lpsig
        Lw3:
        """)
        srd(k, 48, 26, 27, 2304*1152)
        k(f"""
        s_mul_i32 s43, s42, {2*36864}
        s_mul_i32 s46, s3, 9216
        s_add_u32 s43, s43, s46
        """)
        for i in range(9):
            k(f"s_add_u32 m0, s46, {1024*i}\ns_nop 0\nbuffer_load_dwordx4 v8, s[48:51], s43 offen lds\ns_add_u32 s43, s43, 1024")
        k(f"""
        v_lshrrev_b32 v4, 2, v1
        s_movk_i32 s47, 1152
        v_mul_lo_u32 v4, v4, s47
        v_and_b32 v5, 3, v1
        v_lshl_add_u32 v4, v5, 3, v4
        s_mul_i32 s46, s54, 36864
        s_mul_i32 s47, s55, {9*32}
        s_add_u32 s46, s46, s47
        v_add_u32 v4, s46, v4
        s_lshl_b32 s47, s42, 1
        s_add_u32 s47, s47, s54                      ; KB
        s_lshl_b32 s41, s47, 4
        s_lshl_b32 s43, s55, 2
        s_add_u32 s41, s41, s43
        s_add_u32 s41, s41, {F1O}
        s_lshl_b32 s47, s47, 10
        s_mul_i32 s46, s55, {9*72*1024}
        s_add_u32 s47, s47, s46
        s_add_u32 s47, s47, {WS_W3}
        s_waitcnt vmcnt(0)
        s_barrier
        """)
        for i in range(9):
            r = 32 + 4*i
            k(f"ds_read_b64_tr_b16 v[{r}:{r+1}], v4 offset:{32*i}\nds_read_b64_tr_b16 v[{r+2}:{r+3}], v4 offset:{32*i+16*1152}")
        for j in range(9):
            rr = 32 + 4*j
            k(f"s_waitcnt lgkmcnt({min(15, 2*(8-j))})\nbuffer_store_dwordx4 v[{rr}:{rr+3}], v8, {WS}, s47 offen {ST}\ns_add_u32 s47, s47, {72*1024}")
        k("Lpsig:")
        self.signal("s41", 12, 13)
        k("Lwarm:")
        self.tl(4)
        k("s_barrier")
        self.goto(1)

    def tilemap(self):
        self.k(f"""
        s_and_b32 s10, s2, 7
        s_lshr_b32 s11, s2, 3
        s_and_b32 s12, s10, 1
        s_lshl_b32 s12, s12, 3
        s_and_b32 s13, s11, 7
        s_add_u32 s12, s12, s13                ; tb
        s_lshr_b32 s13, s10, 1
        s_lshl_b32 s13, s13, 2
        s_lshr_b32 s14, s11, 3
        s_add_u32 s13, s13, s14                ; j
        s_and_b32 s14, {WAVE}, 3               ; rw
        """)

    def p1(self):
        k = self.k
        USLOT = 19456; NU = 6; HB = USLOT*NU; CB = HB + 16384
        A = 32; EXA = 176; WR = 180; NR = 7; ACC = 208; TMP = 240; PK = 16; PD = 5
        K0, K1, SD = 12, 13, 14
        k("P1:")
        self.tilemap()
        k(f"""
        v_and_b32 v1, 63, v0
        v_lshlrev_b32 v8, 4, v1
        v_and_b32 v2, 31, v1
        v_lshrrev_b32 v3, 5, v1
        s_lshl_b32 s18, s12, 2
        s_add_u32 s18, s18, s14                ; tb32
        s_mul_i32 s20, s13, 9
        s_add_u32 s21, s20, 1
        s_lshr_b32 s21, s21, 1                 ; T2base
        s_lshr_b32 s22, s20, 1                 ; T1base
        s_and_b32 s32, s13, 1
        s_lshl_b32 s33, s14, 11
        s_add_u32 s33, s33, {HB}
        v_add_u32 v7, s33, v8
        s_lshl_b32 s33, s14, 10
        s_add_u32 s33, s33, {CB}
        v_add_u32 v6, s33, v8
        s_lshl_b32 s34, s13, 8
        s_lshl_b32 s33, s18, 2
        s_add_u32 s34, s34, s33
        s_cmp_lt_u32 {WAVE}, 4
        s_cbranch_scc1 Lg1h
        """)
        def S(s): return lambda: k(s)
        def swap_add(a, b, t0, t1):
            return [S(x.strip()) for x in f"""
            v_mov_b32 v{t0}, v{a}
            v_mov_b32 v{t1}, v{b}
            s_nop 1
            v_permlane32_swap_b32 v{a}, v{t0}
            v_permlane32_swap_b32 v{b}, v{t1}
            s_nop 1
            v_add_f32 v{a}, v{a}, v{t0}
            v_add_f32 v{b}, v{b}, v{t1}
            """.strip().split("\n")]
        T = Track(k)
        k(f"""
        s_setprio 1
        v_lshrrev_b32 v24, 4, v2
        s_lshl_b32 s33, s18, 1
        v_add_u32 v24, s33, v24
        s_mov_b32 s33, {72*1024}
        v_mul_lo_u32 v5, v24, s33
        v_and_b32 v24, 15, v2
        v_lshl_add_u32 v5, v24, 4, v5
        v_lshl_add_u32 v5, v3, 8, v5           ; z1 voffset
        s_lshl_b32 s35, s22, 10
        s_add_u32 s35, s35, {WS_Z1}
        s_mul_i32 s19, s18, {36*1024}
        s_add_u32 s19, s19, {WS_HF}
        v_add_u32 v4, {3*USLOT}, v8
        v_cmp_eq_u32 s[74:75], 0, v3
        s_add_u32 s34, s34, {F2Z}
        s_bfe_u32 s33, s18, 0x20001
        s_lshl_b32 s33, s33, 10
        s_add_u32 s33, s33, {F1C}
        v_min_u32 v24, 35, v1
        v_lshlrev_b32 v24, 4, v24
        """)
        for r in range(4): k(f"v_mov_b32 v{TMP+r}, 0\nv_mov_b32 v{EXA+r}, 0x3f803f80")
        if self.o.get("warm", True):
            lab = self.label("nw")
            k(f"s_cmp_lt_u32 s2, 144\ns_cbranch_scc1 {lab}\ns_load_dwordx2 s[56:57], s[0:1], 88\ns_waitcnt lgkmcnt(0)")
            srd(k, 60, 56, 57, 2048*4096)
            k(f"s_sub_u32 s56, s2, 144\ns_lshl_b32 s56, s56, 2\ns_add_u32 s56, s56, s14\ns_mul_i32 s56, s56, {19*1024}")
            for i in range(19): k(f"buffer_load_dwordx4 v[{32+4*i}:{35+4*i}], v8, s[60:63], s56 offen\ns_add_u32 s56, s56, 1024")
            k(f"{lab}:")
        self.poll([f"buffer_load_dwordx4 v[28:31], v24, {WS}, s33 offen {LD}"], [28, 29, 30, 31])
        self.tl(5)
        def aload(ks):
            if ks % 4 == 0 and ks: k("s_add_u32 s19, s19, 4096")
            T.vm(f"buffer_load_dwordx4 v[{A+4*ks}:{A+4*ks+3}], v8, {WS}, s19 offen offset:{(ks%4)*1024} {LD}", ("a", ks))
        al0, al1 = 8, 20
        nxt_a = [al0]
        for ks in range(al0): aload(ks)
        def wread(ti, m):
            u = 2*ti + (0 if m < 18 else 1)
            slot = u % NU
            va, off = (8, slot*USLOT) if slot < 3 else (4, (slot-3)*USLOT)
            off += (m if m < 18 else m-18)*1024
            g = ti*37 + m
            r = WR + (g % NR)*4
            T.lds(f"ds_read_b128 v[{r}:{r+3}], v{va} offset:{off}", ("w", g))
        def mfma(ti, m):
            g = ti*37 + m
            if ti == 0 and m < 36: T.wait_v(("a", m))
            nxt = ("w", g+1)
            if g % 2 == 1 and nxt in T.l: T.wait_l(nxt)
            else: T.wait_l(("w", g))
            a = ACC + (ti % 2)*16; w = WR + (g % NR)*4
            h = A + 4*m if m < 36 else EXA
            c = f"v[{a}:{a+15}]" if m else "0"
            k(f"v_mfma_f32_32x32x16_bf16 v[{a}:{a+15}], v[{w}:{w+3}], v[{h}:{h+3}], {c}")
        def handoff(ti):
            a = ACC + (ti % 2)*16; Fl = []
            for gi, g in enumerate((0, 2, 1, 3)):
                V = a + 4*g
                Fl.append(S(f"v_cvt_pk_bf16_f32 v{PK+2*gi}, v{V}, v{V+1}"))
                Fl.append(S(f"v_cvt_pk_bf16_f32 v{PK+2*gi+1}, v{V+2}, v{V+3}"))
                if gi % 2 == 1:
                    hf = gi // 2; P = PK + 4*hf
                    Fl.append(lambda hf=hf, P=P: T.lds(f"ds_write_b128 v7, v[{P}:{P+3}] offset:{(ti%2)*8192 + hf*1024}", ("ho", ti)))
            return Fl
        def z1store(ti):
            a = ACC + (ti % 2)*16; Fl = []
            for gi, g in enumerate((0, 2, 1, 3)):
                V = a + 4*g; X = TMP + 4*gi
                for e in range(4): Fl.append(S(f"v_mul_f32 v{X+e}, v{V+e}, v29"))
                Fl.append(S(f"v_cvt_pk_bf16_f32 v{PK+2*gi}, v{X}, v{X+1}"))
                Fl.append(S(f"v_cvt_pk_bf16_f32 v{PK+2*gi+1}, v{X+2}, v{X+3}"))
                if gi % 2 == 1:
                    hf = gi // 2; P = PK + 4*hf
                    Fl.append(S(f"buffer_store_dwordx4 v[{P}:{P+3}], v5, {WS}, s35 offen offset:{hf*512} {ST}"))
            Fl.append(S("s_add_u32 s35, s35, 1024"))
            return Fl
        def run(mf, fillers):
            nm = len(mf)
            for i, (m, post) in enumerate(mf):
                m()
                if post: post()
                cnt = -(-len(fillers) // (nm - i))
                for _ in range(cnt):
                    if fillers: fillers.pop(0)()
            while fillers: fillers.pop(0)()
        def barrier():
            T.wait_all_l(); k("s_barrier")
        Hh = 18 - PD + 2
        def mstep(ti, m):
            g = m + PD
            def post():
                if m < Hh and g >= 18: return
                if g < 37: wread(ti, g)
                elif ti + 1 < 9: wread(ti+1, g-37)
            return (lambda: mfma(ti, m), post)
        def mid(ti, bar=True):
            if bar: barrier()
            for g in range(18, Hh+PD): wread(ti, g)
        barrier()
        for m in range(PD): wread(0, m)
        SUM = ACC + 16
        for m in range(36):
            if m == Hh: mid(0)
            for _ in range(2):
                if nxt_a[0] < 36 and nxt_a[0] < m + al1: aload(nxt_a[0]); nxt_a[0] += 1
            mm, post = mstep(0, m)
            mm(); post()
            h = A + 4*m
            k(f"v_dot2c_f32_bf16 v{TMP}, v{h}, v{h}\nv_dot2c_f32_bf16 v{TMP+1}, v{h+1}, v{h+1}")
            k(f"v_mfma_f32_32x32x16_bf16 v[{SUM}:{SUM+15}], v[{EXA}:{EXA+3}], v[{h}:{h+3}], {f'v[{SUM}:{SUM+15}]' if m else '0'}")
            k(f"v_dot2c_f32_bf16 v{TMP+2}, v{h+2}, v{h+2}\nv_dot2c_f32_bf16 v{TMP+3}, v{h+3}, v{h+3}")
        G = TMP
        k(f"""
        s_nop 2
        v_add_f32 v{G}, v{G}, v{G+1}
        v_add_f32 v{G+2}, v{G+2}, v{G+3}
        v_add_f32 v25, v{G}, v{G+2}
        v_mov_b32 v27, v25
        s_nop 1
        v_permlane32_swap_b32 v25, v27
        s_nop 1
        v_add_f32 v25, v25, v27
        v_mov_b32 v24, v{SUM}
        """)
        for x in ln_finalize(24, 25, 576, 26, SD, 29): k(x)
        k(f"""
        v_lshrrev_b32 v27, 16, v26
        v_mul_f32 v{K0}, {H(GC0)}, v29
        v_or_b32 v26, v26, v27
        v_mul_f32 v{K1}, v29, v29
        v_mov_b32 v{EXA+2}, 0
        v_mov_b32 v{EXA+3}, 0
        v_cndmask_b32 v{EXA}, 0, v26, s[74:75]
        v_cndmask_b32 v{EXA+1}, 0, v27, s[74:75]
        v_mul_f32 v{K1}, v{K1}, v{K0}
        v_mul_f32 v{K1}, {H(0.044715)}, v{K1}
        v_mov_b32 v15, 0
        """)
        T.lds("ds_write_b128 v6, v[12:15]", "cw")
        mm, post = mstep(0, 36); mm(); post()
        for i in range(1, 9):
            mf = [mstep(i, m) for m in range(37)]
            run(mf[:5], [])
            k("s_nop 1")
            if i - 1 < 4:
                run(mf[5:11], handoff(i-1)); run(mf[11:Hh], [])
            elif i - 1 == 4:
                run(mf[5:9], handoff(4))
                lab = self.label("t4")
                run(mf[9:Hh], [])
                k(f"s_cmp_eq_u32 s32, 0\ns_cbranch_scc1 {lab}")
                for f in z1store(4): f()
                k(f"{lab}:")
            else:
                run(mf[5:Hh], z1store(i-1))
            mid(i, bar=(i < 8))
            run(mf[Hh:], [])
        k("s_nop 7\ns_nop 4")
        for f in z1store(8): f()
        k("s_setprio 0")
        self.tl(6)
        self.signal("s34", 24, 25)
        k("s_barrier")
        self.goto(2)
        k(f"""
        Lg1h:
        s_add_u32 s23, s21, 72
        s_mul_i32 s28, s23, {37*1024}
        s_mul_i32 s29, s22, {37*1024}
        s_mul_i32 s76, s14, 4608
        s_mul_i32 s77, s14, 4864
        s_mov_b32 s78, -1
        s_mov_b32 s79, 0
        s_mov_b32 s80, -1
        s_mov_b32 s81, 0xffff
        v_min_u32 v24, 19, v2
        v_mov_b32 v25, s23
        v_mov_b32 v26, s22
        v_cmp_eq_u32 vcc, 0, v3
        s_add_u32 s34, s34, {F2}
        s_mov_b32 s33, {F1W}
        v_cndmask_b32 v25, v26, v25, vcc
        v_lshl_add_u32 v24, v25, 2, v24
        v_min_u32 v24, 575, v24
        v_lshlrev_b32 v24, 2, v24
        """)
        self.poll([f"buffer_load_dword v28, v24, {WS}, s33 offen {LD}"], [28])
        k(f"s_cmp_eq_u32 s32, 1\ns_cbranch_scc1 Lg1o")
        def gelu4(V, Y, X):
            E = range(4); Fl = []
            for e in E: Fl.append(S(f"v_mul_f32 v{Y+e}, v{V+e}, v{V+e}"))
            for e in E: Fl.append(S(f"v_fma_f32 v{Y+e}, v{Y+e}, v{K1}, v{K0}"))
            for e in E: Fl.append(S(f"v_mul_f32 v{Y+e}, v{Y+e}, v{V+e}"))
            for e in E: Fl.append(S(f"v_exp_f32 v{Y+e}, v{Y+e}"))
            for e in E: Fl.append(S(f"v_fma_f32 v{Y+e}, v{Y+e}, v{SD}, v{SD}"))
            for e in E: Fl.append(S(f"v_rcp_f32 v{Y+e}, v{Y+e}"))
            for e in E: Fl.append(S(f"v_mul_f32 v{X+e}, v{V+e}, v{Y+e}"))
            return Fl
        def helper(par):
            T = Track(k)
            n2 = 5 - par
            IN = 32; U = 40; TM = 56; ZH = 80; G = 128; OUT = 176
            def dma(u):
                ti = u // 2; half = u % 2
                z2 = ti < n2
                base = 28 if z2 else 29
                toff = (ti if z2 else ti - n2)*37*1024 + half*18432 + WS_W1
                slot = (u % NU)*USLOT
                wo = 77 if half else 76
                msk = "s[80:81]" if half else "s[78:79]"
                Fl = []
                def f0():
                    k(f"s_add_u32 s82, s{base}, s{wo}\ns_add_u32 m0, s{wo}, {slot}\ns_add_u32 s82, s82, {toff}")
                    T.vm(f"buffer_load_dwordx4 v8, {WS}, s82 offen {LD} lds", ("u", u))
                Fl.append(f0)
                for o in range(1, 4): Fl.append(lambda o=o: T.vm(f"buffer_load_dwordx4 v8, {WS}, s82 offen offset:{o*1024} {LD} lds", ("u", u)))
                def f4():
                    k(f"s_add_u32 m0, s{wo}, {slot+4096}\ns_add_u32 s82, s82, 4096\ns_mov_b64 exec, {msk}")
                    T.vm(f"buffer_load_dwordx4 v8, {WS}, s82 offen {LD} lds", ("u", u))
                    k("s_mov_b64 exec, -1")
                Fl.append(f4)
                return Fl
            def go(Fl):
                for f in Fl: f()
            def mix(d, r):
                if not d: return r
                per = max(1, len(r)//len(d)); out = []; d = list(d)
                while d:
                    out.append(d.pop(0)); out += r[:per]; r = r[per:]
                return out + r
            for u in range(6): go(dma(u))
            k(f"""
            s_lshl_b32 s33, s18, 13
            s_add_u32 s37, s33, {WS_ST}
            s_add_u32 s38, s37, 4096
            s_lshl_b32 s33, s13, 9
            s_add_u32 s39, s37, s33
            s_lshl_b32 s33, s14, 12
            s_add_u32 s33, s33, {HB}
            v_lshlrev_b32 v9, 5, v2
            v_lshl_add_u32 v9, v3, 3, v9
            v_add_u32 v9, s33, v9
            v_lshrrev_b32 v10, 4, v1
            v_lshlrev_b32 v10, 8, v10
            v_bfe_u32 v20, v1, 2, 2
            v_lshl_add_u32 v10, v20, 5, v10
            v_and_b32 v20, 3, v1
            v_lshl_add_u32 v10, v20, 3, v10
            v_add_u32 v10, s33, v10
            s_lshl_b32 s33, s13, 6
            s_add_u32 s33, s33, s18
            s_mul_i32 s36, s33, 9216
            s_add_u32 s36, s36, {WS_Z2 + par*1024}
            v_mov_b32 v24, 0
            v_mov_b32 v25, 0
            v_mov_b32 v26, 0
            v_mov_b32 v27, 0
            """)
            T.wait_v(("u", 0)); k("s_barrier")
            def epi(ti):
                Fl = [lambda: T.wait_l(("in", ti))]
                P0 = ZH + 8*ti
                for gi in range(4):
                    V = U + (gi % 2)*8; Y = TM + (gi % 2)*8; X = Y + 4
                    for d in range(2):
                        Fl.append(S(f"v_lshlrev_b32 v{V+2*d}, 16, v{IN+2*gi+d}"))
                        Fl.append(S(f"v_and_b32 v{V+2*d+1}, 0xffff0000, v{IN+2*gi+d}"))
                    Fl += gelu4(V, Y, X)
                    Fl.append(S(f"v_cvt_pk_bf16_f32 v{P0+2*gi}, v{X}, v{X+1}"))
                    Fl.append(S(f"v_cvt_pk_bf16_f32 v{P0+2*gi+1}, v{X+2}, v{X+3}"))
                    for e in range(4):
                        Fl.append(S(f"v_add_f32 v{24+2*(e&1)}, v{24+2*(e&1)}, v{X+e}"))
                        Fl.append(S(f"v_fmac_f32 v{25+2*(e&1)}, v{X+e}, v{X+e}"))
                return Fl
            def publish():
                def st():
                    k(f"v_xor_b32 v26, v24, v25\nv_xor_b32 v26, {NONCE}, v26\ns_mov_b64 exec, s[78:79]")
                    T.vm(f"buffer_store_dwordx4 v[24:27], v8, {WS}, s39 offen {ST}", "pub")
                    k("s_mov_b64 exec, -1")
                return [S("v_add_f32 v24, v24, v26"), S("v_add_f32 v25, v25, v27")] + swap_add(24, 25, 26, 27) + [st]
            pl = [f"buffer_load_dwordx4 v[{G+4*i}:{G+4*i+3}], v8, {WS}, s{37 + i//4} offen offset:{1024*(i%4)} {LD}" for i in range(8)]
            NBAR = 8
            for i in range(NBAR):
                T.wait_all_l()
                T.wait_v(("u", min(2*i+2, 17) if i < NBAR-1 else 17))
                k("s_barrier")
                if i == 1: T.lds("ds_read_b128 v[12:15], v6", "c")
                has = 1 <= i <= n2
                if has:
                    for hf in range(2):
                        T.lds(f"ds_read_b128 v[{IN+4*hf}:{IN+4*hf+3}], v7 offset:{((i-1)%2)*8192 + hf*1024}", ("in", i-1))
                d = dma(6) if i == 0 else sum([dma(u) for u in (2*i+5, 2*i+6) if u < 18], [])
                w = epi(i-1) if has else []
                if i - 1 == n2 - 1: w = w + publish()
                if i == NBAR-2: d = d + [lambda x=x: T.vm(x, "poll") for x in pl]
                go(d[:2] + mix(d[2:], w))
            lab = self.label("zp"); lab2 = self.label("zok"); lab3 = self.label("zck")
            k(f"s_mov_b32 s90, 0\ns_branch {lab3}\n{lab}:")
            for x in pl: k(x)
            k(f"{lab3}:\ns_waitcnt vmcnt(0)")
            for i in range(8):
                r = G + 4*i
                k(f"v_xor_b32 v{r+3}, v{r}, v{r+1}\nv_xor_b32 v{r+2}, {NONCE}, v{r+2}\nv_xor_b32 v{r+2}, v{r+2}, v{r+3}")
                if i: k(f"v_or_b32 v{G+2}, v{G+2}, v{r+2}")
            k(f"""
            v_cmp_ne_u32 vcc, 0, v{G+2}
            s_add_u32 s90, s90, 1
            s_cmp_eq_u64 vcc, 0
            s_cbranch_scc1 {lab2}
            s_cmp_lt_u32 s90, 0x20000
            s_cbranch_scc1 {lab}
            {lab2}:
            """)
            for st_ in (16, 8, 4):
                for i in range(0, st_, 4):
                    k(f"v_add_f32 v{G+i}, v{G+i}, v{G+i+st_}\nv_add_f32 v{G+i+1}, v{G+i+1}, v{G+i+1+st_}")
            go(swap_add(G, G+1, G+2, G+3))
            for x in ln_finalize(G, G+1, 2304, G+2, G+3, G+4): k(x)
            k(f"v_mul_f32 v{G+5}, -v{G+2}, v{G+4}")
            def norm(ti):
                for hf in range(2):
                    X = G + 8 + hf*8; P = ZH + ti*8 + hf*4
                    for d in range(4):
                        k(f"v_lshlrev_b32 v{X+2*d}, 16, v{P+d}\nv_and_b32 v{X+2*d+1}, 0xffff0000, v{P+d}")
                    for e in range(8): k(f"v_fma_f32 v{X+e}, v{X+e}, v{G+4}, v{G+5}")
                    for d in range(4): k(f"v_cvt_pk_bf16_f32 v{P+d}, v{X+2*d}, v{X+2*d+1}")
                    k(f"ds_write_b64 v9, v[{P}:{P+1}] offset:{(ti%2)*2048 + hf*16}")
                    k(f"ds_write_b64 v9, v[{P+2}:{P+3}] offset:{(ti%2)*2048 + 1024 + hf*16}")
            def trd(ti):
                O = OUT + ti*8
                for b in range(2):
                    k(f"ds_read_b64_tr_b16 v[{O+4*b}:{O+4*b+1}], v10 offset:{(ti%2)*2048 + b*1024}")
                    k(f"ds_read_b64_tr_b16 v[{O+4*b+2}:{O+4*b+3}], v10 offset:{(ti%2)*2048 + b*1024 + 128}")
            def sto(ti):
                O = OUT + ti*8
                k(f"buffer_store_dwordx4 v[{O}:{O+3}], v8, {WS}, s36 offen {ST}")
                if par == 0 and ti == 4:
                    k(f"s_add_u32 s36, s36, {64*9216 - 8*1024}")
                    k(f"buffer_store_dwordx4 v[{O+4}:{O+7}], v8, {WS}, s36 offen {ST}")
                else:
                    k(f"buffer_store_dwordx4 v[{O+4}:{O+7}], v8, {WS}, s36 offen offset:1024 {ST}")
                k("s_add_u32 s36, s36, 2048")
            for ti in range(n2):
                norm(ti); trd(ti)
                if ti >= 1:
                    k("s_waitcnt lgkmcnt(8)"); sto(ti-1)
            k("s_waitcnt lgkmcnt(0)"); sto(n2-1)
            self.tl(6)
            k("s_barrier")
            self.signal("s34", 24, 25)
            self.goto(2)
        helper(0)
        k("Lg1o:")
        helper(1)

    def p2(self):
        k = self.k
        SLOT = 34816; NS = 4
        k(f"""
        P2:
        s_load_dwordx4 s[4:7], s[0:1], 88
        """)
        self.tilemap()
        k(f"""
        v_and_b32 v2, 63, v0
        v_lshlrev_b32 v5, 4, v2
        s_lshl_b32 s28, s12, 3
        s_lshl_b32 s29, s14, 1
        s_add_u32 s28, s28, s29
        s_mul_i32 s29, s28, 72
        s_mul_i32 s30, s13, 9
        s_lshr_b32 s30, s30, 1
        s_add_u32 s29, s29, s30
        s_lshl_b32 s29, s29, 10
        s_mul_i32 s37, s14, 10240
        v_add_u32 v24, s37, v5
        s_waitcnt lgkmcnt(0)
        """)
        srd(k, 16, 4, 5, 2048*2048*2)
        srd(k, 20, 6, 7, 4096)
        k(f"s_cmp_ge_u32 {WAVE}, 4\ns_cbranch_scc1 Lg2l")
        ACC = 128; F0 = 32; F1 = 76; Z1R = 200
        k(f"""
        v_and_b32 v3, 15, v2
        v_lshrrev_b32 v4, 4, v2
        s_add_u32 s32, s29, {WS_P}
        s_add_u32 s33, s32, {72*1024}
        s_lshl_b32 s36, s28, 5
        v_lshlrev_b32 v6, 1, v3
        buffer_load_ushort v7, v6, s[20:23], s36 offen
        buffer_load_ushort v8, v6, s[20:23], s36 offen offset:32
        v_add_u32 v11, {2*SLOT}, v5
        s_lshl_b32 s37, s14, 12
        v_lshrrev_b32 v9, 1, v3
        v_xor_b32 v9, v9, v4
        v_lshlrev_b32 v9, 4, v9
        v_lshl_add_u32 v9, v3, 7, v9
        v_add_u32 v12, s37, v9
        v_xor_b32 v13, 64, v12
        v_add_u32 v14, {2*SLOT}, v12
        v_add_u32 v15, {2*SLOT}, v13
        v_add_u32 v23, 4096, v5
        s_lshl_b32 s34, s28, 5                 ; tb32*64
        s_lshl_b32 s35, s13, 2
        s_add_u32 s34, s34, s35
        s_add_u32 s34, s34, {F3}
        s_waitcnt vmcnt(0)
        v_lshlrev_b32 v7, 16, v7
        v_lshlrev_b32 v8, 16, v8
        """)
        for fb in range(9):
            for tt in range(2):
                for r in range(4): k(f"v_mov_b32 v{ACC + (fb*2+tt)*4 + r}, v{7+tt}")
        def reads(slot, kb, Fr):
            L = []; so = (slot % 2)*SLOT; hi = slot // 2
            def z(fb):
                r = Fr + 8 + fb*4
                L.append(f"ds_read_b128 v[{r}:{r+3}], v{11 if hi else 5} offset:{so+(kb*9+fb)*1024}")
            def w(tt):
                r = Fr + tt*4
                L.append(f"ds_read_b128 v[{r}:{r+3}], v{12+2*hi+kb} offset:{so+18432+tt*2048}")
            w(0); z(0); w(1)
            for fb in range(1, 9): z(fb)
            return L
        def half(Fr, rd):
            i = 0
            for fb in range(9):
                for tt in range(2):
                    a = ACC + (fb*2+tt)*4; z = Fr + 8 + fb*4; w = Fr + tt*4
                    k(f"v_mfma_f32_16x16x32_bf16 v[{a}:{a+3}], v[{z}:{z+3}], v[{w}:{w+3}], v[{a}:{a+3}]")
                    if i < len(rd): k(rd[i]); i += 1
            k("s_waitcnt lgkmcnt(0)")
        k("s_barrier")
        self.tl(7)
        for r in reads(0, 0, F0): k(r)
        k("s_waitcnt lgkmcnt(0)\ns_mov_b32 s38, 0\nLg2c:")
        for s in range(NS):
            half(F0, reads(s, 1, F1))
            k("s_barrier")
            half(F1, reads((s+1) % NS, 0, F0))
        k("s_add_u32 s38, s38, 1\ns_cmp_lt_u32 s38, 8\ns_cbranch_scc1 Lg2c")
        self.tl(8)
        for i in range(10): k(f"ds_read_b128 v[{Z1R+4*i}:{Z1R+4*i+3}], v24 offset:{1024*i}")
        k("s_and_b32 s39, s13, 1\ns_cmp_eq_u32 s39, 1\ns_cbranch_scc1 Lg2eo")
        def epi(odd):
            for tt in range(2):
                for u in range(5):
                    fbs = [2*u - odd, 2*u + 1 - odd]
                    zr = Z1R + tt*20 + u*4
                    T = F0 + (u % 2)*16 + tt*32
                    k(f"s_waitcnt lgkmcnt({9 - (tt*5+u)})")
                    for hf in range(2):
                        fb = fbs[hf]
                        if fb < 0 or fb > 8: continue
                        a = ACC + (fb*2+tt)*4
                        for d in range(2):
                            z = zr + hf*2 + d
                            k(f"v_lshlrev_b32 v{T+2*d}, 16, v{z}\nv_and_b32 v{T+2*d+1}, 0xffff0000, v{z}")
                        for e in range(4): k(f"v_mul_f32 v{T+e}, v{T+e}, v{a+e}")
                        for d in range(2): k(f"v_cvt_pk_bf16_f32 v{T+8+hf*2+d}, v{T+2*d}, v{T+2*d+1}")
                    so = 32 + tt
                    off, va = (u*1024, 5) if u < 4 else (0, 23)
                    if fbs[0] >= 0 and fbs[1] <= 8:
                        k(f"buffer_store_dwordx4 v[{T+8}:{T+11}], v{va}, {WS}, s{so} offen offset:{off} {ST}")
                    elif fbs[0] < 0:
                        k(f"buffer_store_dwordx2 v[{T+10}:{T+11}], v{va}, {WS}, s{so} offen offset:{off+8} {ST}")
                    else:
                        k(f"buffer_store_dwordx2 v[{T+8}:{T+9}], v{va}, {WS}, s{so} offen offset:{off} {ST}")
            self.signal("s34", 26, 27)
            self.tl(9)
            k("s_endpgm")
        epi(0)
        k("Lg2eo:")
        epi(1)
        k(f"""
        Lg2l:
        v_lshrrev_b32 v3, 3, v2
        v_and_b32 v4, 7, v2
        v_lshrrev_b32 v9, 4, v2
        s_lshl_b32 s34, s12, 7
        s_lshl_b32 s35, s14, 5
        s_add_u32 s34, s34, s35
        s_lshl_b32 s34, s34, 12
        """)
        for i in range(4):
            k(f"""
            v_add_u32 v6, {4*i}, v9
            v_and_b32 v6, 7, v6
            v_xor_b32 v6, v6, v4
            v_lshlrev_b32 v6, 4, v6
            v_add_u32 v7, {8*i}, v3
            v_lshl_add_u32 v6, v7, 12, v6
            v_add_u32 v6, s34, v6
            v_subrev_u32 v{10+i}, {1024*i}, v6
            """)
        k(f"""
        v_add_u32 v15, 4096, v5
        s_mul_i32 s30, s13, {64*9*1024}
        s_mul_i32 s31, s14, 4608
        s_add_u32 s30, s30, s31
        s_add_u32 s30, s30, {WS_Z2}
        s_mov_b32 s32, 0
        s_lshl_b32 s33, s14, 12
        s_add_u32 s33, s33, 18432
        s_mov_b32 s42, -1
        s_mov_b32 s43, 0
        """)
        T = Track(k)
        def issueW(st):
            slot = st % NS
            k(f"s_add_u32 m0, s33, {slot*SLOT}\ns_nop 0")
            for i in range(4):
                T.vm(f"buffer_load_dwordx4 v{10+i}, s[16:19], s32 offen offset:{1024*i} lds", ("d", st))
            k("s_add_u32 s32, s32, 128")
        def issueZ(st):
            slot = st % NS
            k(f"s_add_u32 m0, s31, {slot*SLOT}\ns_nop 0")
            for i in range(4):
                T.vm(f"buffer_load_dwordx4 v5, {WS}, s30 offen offset:{1024*i} {LD} lds", ("d", st))
            k(f"s_add_u32 m0, s31, {slot*SLOT+4096}\ns_mov_b64 exec, s[42:43]")
            T.vm(f"buffer_load_dwordx4 v15, {WS}, s30 offen {LD} lds", ("d", st))
            k("s_mov_b64 exec, -1\ns_add_u32 s30, s30, 18432")
        for st in range(4): issueW(st)
        k(f"""
        v_lshlrev_b32 v16, 2, v2
        s_lshl_b32 s44, s13, 8
        s_add_u32 s44, s44, {F2}
        s_and_b32 s45, s13, 14
        s_lshl_b32 s45, s45, 8
        s_add_u32 s45, s45, {F2}
        """)
        self.poll([f"buffer_load_dword v17, v16, {WS}, s44 offen {LD}", f"buffer_load_dword v18, v16, {WS}, s45 offen {LD}"], [17, 18])
        T.v_done = len(T.v) - 1
        self.tl(7)
        ZR = 32
        issueZ(0); issueZ(1)
        T.wait_v(("d", 0))
        k("s_barrier")
        issueZ(2); issueZ(3)
        G = []
        for g in range(20):
            src = ZR + 2*g; V = 80 + (g % 2)*12; Y = V + 4; E = range(4)
            L = [f"v_lshlrev_b32 v{V}, 16, v{src}", f"v_and_b32 v{V+1}, 0xffff0000, v{src}", f"v_lshlrev_b32 v{V+2}, 16, v{src+1}", f"v_and_b32 v{V+3}, 0xffff0000, v{src+1}"]
            L += [f"v_mul_f32 v{Y+e}, v{V+e}, v{V+e}" for e in E]
            L += [f"v_fma_f32 v{Y+e}, v{Y+e}, v21, v20" for e in E]
            L += [f"v_mul_f32 v{Y+e}, v{Y+e}, v{V+e}" for e in E]
            L += [f"v_exp_f32 v{Y+e}, v{Y+e}" for e in E]
            L += [f"v_add_f32 v{Y+e}, 1.0, v{Y+e}" for e in E]
            L += [f"v_rcp_f32 v{Y+e}, v{Y+e}" for e in E]
            L += [f"v_mul_f32 v{V+e}, v{V+e}, v{Y+e}" for e in E]
            L += [f"v_cvt_pk_bf16_f32 v{src}, v{V}, v{V+1}", f"v_cvt_pk_bf16_f32 v{src+1}, v{V+2}, v{V+3}"]
            G += L
        per = -(-len(G) // 23); G = [G[i:i+per] for i in range(0, len(G), per)]
        k(f"""
        s_add_u32 s44, s29, {WS_Z1}
        s_add_u32 s45, s44, {72*1024}
        v_mov_b32 v20, {H(GC0)}
        v_mov_b32 v21, {H(GC1)}
        s_lshl_b32 s46, s13, 8
        s_or_b32 s47, s13, 1
        s_lshl_b32 s47, s47, 8
        v_mov_b32 v16, s46
        v_mov_b32 v17, s47
        v_cmp_gt_u32 vcc, 32, v2
        s_lshl_b32 s46, s28, 1
        s_add_u32 s46, s46, {F2Z}
        v_cndmask_b32 v16, v17, v16, vcc
        """)
        T.vm(f"buffer_load_dword v18, v16, {WS}, s46 offen {LD}", "zf")
        slow = self.label("zs"); back = self.label("zb")
        for s in range(32):
            if s + 1 < 32: T.wait_v(("d", s+1))
            if s == 31: k("s_waitcnt lgkmcnt(0)")
            k("s_barrier")
            if s + 4 < 32: issueW(s+4); issueZ(s+4)
            if s == 2:
                T.wait_v("zf")
                k(f"v_cmp_ne_u32 vcc, {NONCE}, v18\ns_nop 0\ns_cmp_eq_u64 vcc, 0\ns_cbranch_scc0 {slow}\n{back}:")
                for tt in range(2):
                    for u in range(5):
                        r = ZR + tt*20 + u*4
                        T.vm(f"buffer_load_dwordx4 v[{r}:{r+3}], v{5 if u < 4 else 15}, {WS}, s{44+tt} offen offset:{(u%4)*1024 if u < 4 else 0} {LD}", "z1")
            if s >= 6 and G:
                T.wait_v("z1")
                for x in G.pop(0): k(x)
            if s == 29:
                assert not G
                for i in range(10): k(f"ds_write_b128 v24, v[{ZR+4*i}:{ZR+4*i+3}] offset:{1024*i}")
        self.goto(3)
        k(f"{slow}:")
        self.poll([f"buffer_load_dword v18, v16, {WS}, s46 offen {LD}"], [18])
        k(f"s_branch {back}")

    def p3(self):
        k = self.k
        depth = 3
        k(f"""
        P3:
        s_load_dwordx2 s[4:5], s[0:1], 112
        v_and_b32 v2, 63, v0
        s_and_b32 s3, {WAVE}, 3
        s_and_b32 s10, s2, 7
        s_lshr_b32 s11, s2, 3
        s_lshr_b32 s12, s10, 1
        s_lshl_b32 s12, s12, 3
        s_and_b32 s13, s11, 7
        s_add_u32 s12, s12, s13                ; tb64
        s_and_b32 s13, s10, 1
        s_lshl_b32 s13, s13, 2
        s_lshr_b32 s14, s11, 3
        s_add_u32 s13, s13, s14                ; col
        s_mul_i32 s14, s13, 9
        s_add_u32 s14, s14, 1
        s_lshr_b32 s14, s14, 1                 ; D0
        v_lshlrev_b32 v5, 4, v2
        s_mul_i32 s15, s12, {4*72*1024}
        s_add_u32 s15, s15, {WS_P}
        s_mul_i32 s28, s14, {72*1024}
        s_add_u32 s28, s28, {WS_W3}
        s_mul_i32 s29, s3, {18*1024}           ; P soffset
        s_mov_b32 s31, s29                     ; W soffset
        """)
        for tt in range(4): k(f"v_add_u32 v{8+tt}, s15, v5\ns_add_u32 s15, s15, {72*1024}")
        for dd in range(5): k(f"v_add_u32 v{12+dd}, s28, v5\ns_add_u32 s28, s28, {72*1024}")
        k("s_waitcnt lgkmcnt(0)")
        srd(k, 16, 4, 5, 2048*576*2)
        k(f"""
        v_and_b32 v3, 15, v2
        v_lshrrev_b32 v4, 4, v2
        s_lshl_b32 s30, s12, 1
        s_lshr_b32 s32, s3, 1
        s_add_u32 s30, s30, s32
        s_mul_i32 s30, s30, 36
        s_add_u32 s30, s30, s14
        s_lshl_b32 s30, s30, 10
        s_add_u32 s30, s30, {WS_HF}
        s_and_b32 s32, s3, 1
        s_lshl_b32 s32, s32, 8
        s_add_u32 s30, s30, s32
        v_lshrrev_b32 v6, 1, v4
        v_lshlrev_b32 v6, 9, v6
        v_and_b32 v7, 1, v4
        v_lshl_add_u32 v6, v7, 3, v6
        v_lshl_add_u32 v6, v3, 4, v6
        s_lshl_b32 s32, s12, 6
        s_lshl_b32 s33, s3, 4
        s_add_u32 s32, s32, s33
        v_add_u32 v7, s32, v3
        s_movk_i32 s33, 1152
        v_mul_lo_u32 v7, v7, s33
        v_lshl_add_u32 v7, v4, 3, v7
        s_lshl_b32 s33, s14, 5
        v_min_u32 v17, 35, v2
        v_lshlrev_b32 v17, 3, v17
        s_mul_i32 s36, s3, 288
        s_add_u32 s36, s36, {F1O}
        v_and_b32 v18, 3, v2
        v_bfe_u32 v19, v2, 2, 1
        v_lshlrev_b32 v18, 2, v18
        v_lshl_add_u32 v18, v19, 6, v18
        s_lshl_b32 s37, s12, 7
        s_lshl_b32 s38, s3, 4
        s_add_u32 s37, s37, s38
        s_add_u32 s37, s37, {F3}
        """)
        self.poll([f"buffer_load_dwordx2 v[30:31], v17, {WS}, s36 offen {LD}"], [30, 31])
        k("s_and_b32 s34, s13, 1\ns_cmp_eq_u32 s34, 1\ns_cbranch_scc1 Lg3b")
        ACC = 160; SET = 40; RES = 20
        def body(nd):
            T = Track(k)
            def loadW(st):
                Fr = SET + (st % depth)*36
                for i in range(nd):
                    r = Fr + 16 + i*4
                    T.vm(f"buffer_load_dwordx4 v[{r}:{r+3}], v{12+i}, {WS}, s31 offen {LD}", ("s", st))
                k("s_add_u32 s31, s31, 1024")
            def loadP(st):
                Fr = SET + (st % depth)*36
                for i in range(4):
                    r = Fr + i*4
                    T.vm(f"buffer_load_dwordx4 v[{r}:{r+3}], v{8+i}, {WS}, s29 offen {LD}", ("s", st))
                k("s_add_u32 s29, s29, 1024")
            for st in range(depth): loadW(st)
            k("s_add_u32 s35, s30, 4096")
            for dd in range(nd):
                k(f"buffer_load_dwordx2 v[{RES+2*dd}:{RES+2*dd+1}], v6, {WS}, s{30 if dd < 4 else 35} offen offset:{(dd%4)*1024} {LD}")
            self.poll([f"buffer_load_dword v30, v18, {WS}, s37 offen {LD}"], [30])
            T.v_done = len(T.v) - 1
            self.tl(10)
            for st in range(depth): loadP(st)
            for st in range(18):
                T.wait_v(("s", st))
                Fr = SET + (st % depth)*36
                for dd in range(nd):
                    for tt in range(4):
                        a = ACC + (dd*4+tt)*4; w = Fr + 16 + dd*4; p = Fr + tt*4
                        k(f"v_mfma_f32_16x16x32_bf16 v[{a}:{a+3}], v[{w}:{w+3}], v[{p}:{p+3}], {f'v[{a}:{a+3}]' if st else '0'}")
                if st + depth < 18: loadP(st+depth); loadW(st+depth)
            self.tl(11)
            k(f"""
            s_mul_i32 s36, s3, 20480
            v_add_u32 v18, s36, v5
            s_mul_i32 s36, s3, 5120
            v_add_u32 v19, s36, v5
            v_add_u32 v34, 40960, v19
            s_nop 2
            s_barrier
            """)
            for tt in range(4):
                for dd in range(nd):
                    a = ACC + (dd*4+tt)*4
                    k(f"ds_write_b128 v18, v[{a}:{a+3}] offset:{(tt*5+dd)*1024}")
            k("s_waitcnt lgkmcnt(0)\ns_barrier")
            for dd in range(nd):
                for w in range(4):
                    r = SET + (dd*4+w)*4
                    k(f"ds_read_b128 v[{r}:{r+3}], v{19 if w < 2 else 34} offset:{(w%2)*20480 + dd*1024}")
            for dd in range(nd):
                k(f"s_waitcnt lgkmcnt({min(15,(nd-1-dd)*4)})")
                r = SET + dd*16
                for i in range(4): k(f"v_add_f32 v{r+i}, v{r+i}, v{r+4+i}\nv_add_f32 v{r+8+i}, v{r+8+i}, v{r+12+i}")
                for i in range(4): k(f"v_add_f32 v{r+i}, v{r+i}, v{r+8+i}")
                h = RES + 2*dd
                k(f"""
                v_cvt_pk_bf16_f32 v{r+4}, v{r}, v{r+1}
                v_cvt_pk_bf16_f32 v{r+5}, v{r+2}, v{r+3}
                v_lshlrev_b32 v{r+8}, 16, v{h}
                v_and_b32 v{r+9}, 0xffff0000, v{h}
                v_lshlrev_b32 v{r+10}, 16, v{h+1}
                v_and_b32 v{r+11}, 0xffff0000, v{h+1}
                v_lshlrev_b32 v{r}, 16, v{r+4}
                v_and_b32 v{r+1}, 0xffff0000, v{r+4}
                v_lshlrev_b32 v{r+2}, 16, v{r+5}
                v_and_b32 v{r+3}, 0xffff0000, v{r+5}
                v_add_f32 v{r}, v{r}, v{r+8}
                v_add_f32 v{r+1}, v{r+1}, v{r+9}
                v_add_f32 v{r+2}, v{r+2}, v{r+10}
                v_add_f32 v{r+3}, v{r+3}, v{r+11}
                v_cvt_pk_bf16_f32 v{r+4}, v{r}, v{r+1}
                v_cvt_pk_bf16_f32 v{r+5}, v{r+2}, v{r+3}
                buffer_store_dwordx2 v[{r+4}:{r+5}], v7, s[16:19], s33 offen offset:{dd*32}
                """)
            self.tl(12)
            k("s_branch Lfin")
        body(5)
        k("Lg3b:")
        body(4)
        k(f"""
        Lfin:
        s_lshl_b32 s3, s3, 8
        s_or_b32 s3, s3, s2
        s_cmp_eq_u32 s3, 0
        s_cbranch_scc0 Lend
        v_mov_b32 v2, {NONCE}
        v_mov_b32 v3, 0
        s_mov_b32 s3, {WS_EP}
        s_mov_b64 exec, 1
        buffer_store_dword v2, v3, {WS}, s3 offen
        Lend:
        s_endpgm
        """)

def build(path, **o):
    f = F(**o)
    f.p0(); f.p1(); f.p2(); f.p3()
    ref = open(f"cdna_kernels/{NAME}.s.ref").read().split("\n")
    hdr = []
    for l in ref:
        if l.startswith("; Override"): break
        hdr.append(l)
    hdr = "\n".join(hdr) + "\n; Generated by a hand-written generator script. One persistent launch: LN1+S4 kernel+conv+weight packing -> GEMM1 -> GEMM2 -> GEMM3\n"
    write_file(path, [f.k], [f.k], header=hdr)

if __name__ == "__main__":
    build("f_full.s")
    build("f_tl.s", tl=True)
    for s in range(3): build(f"f_s{s}.s", stop=s)
```
